```python
import torch

def _softmax(x, axis=-1):
    return torch.softmax(x, dim=axis)
def _gelu(x):
    return torch.nn.functional.gelu(x, approximate="tanh")
def _silu(x):
    return torch.nn.functional.silu(x)
def _sigmoid(x):
    return torch.sigmoid(x)
def _layernorm(x, axis=-1, eps=1e-5):
    m = x.mean(dim=axis, keepdim=True)
    v = x.var(dim=axis, keepdim=True, unbiased=False)
    return (x - m) / torch.sqrt(v + eps)
def _scatter_add(tgt, idx, src, axis=0):
    return tgt.clone().index_add_(axis, idx, src)
def _segment_sum(src, seg, n):
    out = torch.zeros((n,) + src.shape[1:], dtype=src.dtype)
    return out.index_add_(0, seg, src)
def _pad(x, pw):
    flat = tuple(v for pair in reversed(pw) for v in pair)
    return torch.nn.functional.pad(x, flat)

kernel_name = 'standalone__hybrid_graph_tf_nagphormer__graph'

def setup_inputs():

    _w = (lambda a: (lambda t: t.to(torch.bfloat16) if t.is_floating_point() else t)(torch.as_tensor(a)))
    N, deg, D = 12500, 32, 128
    E = N * deg
    src = (lambda lo, hi, *s: torch.randint(lo, hi, s))(0, N, E).to(torch.int64)
    dst = (lambda lo, hi, *s: torch.randint(lo, hi, s))(0, N, E).to(torch.int64)
    deg_cnt = torch.bincount(dst, minlength=N).to(float) + 1.0
    sc = 1.0 / D ** 0.5
    return {
        "x": _w((lambda *s: torch.randn(*s, dtype=torch.bfloat16) * 0.1)(N, D)),
        "src": _w(src),
        "dst": _w(dst),
        "deg_inv_sqrt": _w(1.0 / (lambda _x: torch.sqrt(torch.as_tensor(_x)))(deg_cnt)),
        "wq": _w((lambda *s: torch.randn(*s, dtype=torch.bfloat16) * 1.6)(D, D) * sc),
        "wk": _w((lambda *s: torch.randn(*s, dtype=torch.bfloat16) * 1.6)(D, D) * sc),
        "wv": _w((lambda *s: torch.randn(*s, dtype=torch.bfloat16) * 0.1)(D, D) * sc),
        "wo": _w((lambda *s: torch.randn(*s, dtype=torch.bfloat16) * 0.1)(D, D) * sc),
        "w_r": _w((lambda *s: torch.randn(*s, dtype=torch.bfloat16) * 0.1)(D)),
    }

def reference(x, src, dst, deg_inv_sqrt, wq, wk, wv, wo, w_r):
    N, D = x.shape[0], x.shape[1]
    K = 7
    h = x
    toks = [x]
    for _ in range(K):
        msg = h[src] * deg_inv_sqrt[src, None] * deg_inv_sqrt[dst, None]
        h = _segment_sum(msg, dst, N)
        toks.append(h)
    tok = torch.stack(toks, axis=1)
    t = _layernorm(tok, axis=-1)
    q   = torch.einsum('nkd,de->nke', t, wq)
    key = torch.einsum('nkd,de->nke', t, wk)
    v   = torch.einsum('nkd,de->nke', t, wv)
    scale = 1.0 / (D ** 0.5)
    attn = _softmax(torch.einsum('nkd,nld->nkl', q, key) * scale, axis=-1)
    o = torch.einsum('nkl,nld->nkd', attn, v)
    o = tok + torch.einsum('nkd,de->nke', o, wo)
    r = _layernorm(o, axis=-1)
    alpha = _softmax(torch.einsum('nkd,d->nk', r, w_r), axis=-1)
    return torch.einsum('nk,nkd->nd', alpha, o)
```

```python
N = 12500; NP = 12544; NG = 196; E = 400000; NCH = 250; CH = 1600
HSZ = 32 * NP * 8
SLB = NP * 8
OFF_H = 0
OFF_G = OFF_H + 8 * HSZ
OFF_EDG = OFF_G + 8 * HSZ
OFF_OFFS = OFF_EDG + 1600512
OFF_SCHED = OFF_OFFS + NCH * 1024
OFF_META = OFF_SCHED + NG * 8192
OFF_OVF = OFF_META + 4096
OFF_W = OFF_OVF + 1600512
W_M = 0; W_V = 32768; W_X1 = 65536; W_X2 = 69632; W_S = 73728
OFF_FLAG = OFF_W + 73984
WS_END = OFF_FLAG + 256 * 128
OFF_DBG = 128 << 20
import math
SCALE_LOG2E = (1.0 / math.sqrt(128.0)) * math.log2(math.e)
import struct
def f32hex(x): return '0x%08x' % struct.unpack('<I', struct.pack('<f', x))[0]
assert all(o % 256 == 0 for o in (OFF_G, OFF_EDG, OFF_OFFS, OFF_SCHED, OFF_META, OFF_OVF, OFF_W, OFF_FLAG))
import os
SE = int(os.environ.get('SE', '8'))
```

```python
import re

REG_RE = re.compile(r'\b([vas])(\d+)\b|\b([vas])\[(\d+):(\d+)\]|\b(vcc_lo|vcc_hi|vcc|exec_lo|exec_hi|exec|m0|scc)\b')
TRANS = ('v_exp_', 'v_log_', 'v_rcp_', 'v_rsq_', 'v_sqrt_', 'v_sin_', 'v_cos_')

def regs_of(tok):
    out = set()
    for m in REG_RE.finditer(tok):
        if m.group(1):
            out.add((m.group(1), int(m.group(2))))
        elif m.group(3):
            for i in range(int(m.group(4)), int(m.group(5)) + 1):
                out.add((m.group(3), i))
        else:
            n = m.group(6)
            if n.startswith('vcc'): out.add(('s', 'vcc'))
            elif n.startswith('exec'): out.add(('s', 'exec'))
            elif n == 'm0': out.add(('s', 'm0'))
    return out

def split_ops(s):
    ops, cur, d = [], '', 0
    for ch in s:
        if ch == '[': d += 1
        if ch == ']': d -= 1
        if ch == ',' and d == 0:
            ops.append(cur.strip()); cur = ''
        else:
            cur += ch
    if cur.strip(): ops.append(cur.strip())
    return ops

class Ins:
    __slots__ = ('text', 'op', 'kind', 'dst', 'src', 'ops', 'dpp', 'sdwa_dst', 'trans', 'passes',
                 'srcA', 'srcB', 'srcC', 'wide_store', 'ws', 'target', 'lanesel', 'dot', 'sgemm', 'lds_dma')
    def __init__(self, text):
        self.text = text
        t = text.split(';')[0].strip()
        p = t.split(None, 1)
        op = p[0]; rest = p[1] if len(p) > 1 else ''
        self.op = op
        ops = split_ops(rest)
        self.ops = ops
        self.dpp = ('quad_perm' in rest or 'row_' in rest or 'wave_' in rest or op.endswith('_dpp'))
        self.sdwa_dst = False
        self.trans = op.startswith(TRANS)
        self.passes = 0; self.srcA = self.srcB = self.srcC = set()
        self.wide_store = set(); self.ws = 1; self.target = None; self.lanesel = set()
        self.dot = op.startswith('v_dot'); self.sgemm = False; self.lds_dma = False
        R = [regs_of(o) for o in ops]
        allr = set().union(*R) if R else set()
        dst, src = set(), set()
        if op.startswith('v_mfma') or op.startswith('v_smfmac'):
            self.kind = 'mfma'
            dst = R[0]; self.srcA = R[1]; self.srcB = R[2]
            if op.startswith('v_smfmac'):
                self.srcC = R[0]; self.srcB = R[2] | R[3]
            else:
                self.srcC = R[3]
            src = self.srcA | self.srcB | self.srcC
            if '16x16x4_f32' in op: self.passes = 8; self.sgemm = True
            elif '32x32x2_f32' in op: self.passes = 16; self.sgemm = True
            elif '32x32' in op: self.passes = 8
            elif '4x4x4' in op: self.passes = 2
            elif 'smfmac' in op and '16x16x64' in op: self.passes = 8
            else: self.passes = 4
        elif op.startswith('v_'):
            self.kind = 'valu'
            if op.startswith('v_nop'):
                pass
            elif op.startswith('v_swap') or 'permlane' in op:
                dst = R[0] | R[1]; src = set(dst)
            elif op.startswith('v_cmpx'):
                dst = R[0] | {('s', 'exec')}; src = set().union(*R[1:])
            elif '_co_' in op or op.startswith('v_div_scale') or op.startswith('v_mad_u64') or op.startswith('v_mad_i64'):
                dst = R[0] | R[1]; src = set().union(*R[2:])
            else:
                dst = R[0]; src = set().union(*R[1:]) if len(R) > 1 else set()
                if op.startswith(('v_fmac', 'v_mac', 'v_dot2c', 'v_dot4c', 'v_pk_fmac', 'v_writelane')) or self.dpp or 'dst_unused:UNUSED_PRESERVE' in rest:
                    src = src | R[0]
                if op.startswith(('v_readlane', 'v_writelane')):
                    self.lanesel = R[2]
            m = re.search(r'dst_sel:(\w+)', rest)
            if m and m.group(1) != 'DWORD': self.sdwa_dst = True
            if 'op_sel' in rest and not op.startswith('v_pk'): self.sdwa_dst = True
        elif op.startswith('ds_'):
            self.kind = 'ds'
            if op.startswith(('ds_read', 'ds_bpermute', 'ds_permute', 'ds_swizzle', 'ds_append', 'ds_consume')) or '_rtn' in op:
                dst = R[0]; src = set().union(*R[1:]) if len(R) > 1 else set()
            else:
                src = allr
        elif op.startswith(('global_', 'buffer_', 'flat_')):
            self.kind = 'vmem'
            if '_lds_' in op or re.search(r'\blds\b', rest):
                src = allr | {('s', 'm0')}; self.lds_dma = True
            elif '_load' in op:
                dst = R[0]; src = set().union(*R[1:])
                if 'd16' in op: src = src | R[0]
            elif '_atomic' in op and re.search(r'\bsc0\b', rest):
                dst = R[0]; src = set().union(*R[1:])
            else:
                src = allr
                if 'dwordx4' in op or 'dwordx3' in op:
                    self.wide_store = R[1] if op.startswith(('global', 'flat')) else R[0]
        elif op.startswith('s_'):
            self.kind = 'salu'
            if op == 's_nop':
                self.ws = int(ops[0], 0) + 1
            elif op.startswith(('s_branch', 's_cbranch')):
                self.target = ops[0]
            elif op.startswith(('s_waitcnt', 's_barrier', 's_endpgm', 's_sleep', 's_setprio', 's_cmp', 's_bitcmp', 's_sethalt', 's_setreg')):
                src = allr
            else:
                dst = R[0] if R else set(); src = set().union(*R[1:]) if len(R) > 1 else set()
                if 'saveexec' in op: dst = dst | {('s', 'exec')}
        else:
            raise ValueError('unknown instr ' + text)
        self.dst, self.src = dst, src

def vg(s): return {r for r in s if r[0] in 'va'}
def sg(s): return {r for r in s if r[0] == 's'}

def need(p, c):
    n = 0
    if p.kind == 'valu':
        sd = sg(p.dst); vd = vg(p.dst)
        if sd:
            if c.kind == 'vmem' and (sd - {('s', 'exec')}) & c.src: n = max(n, 5)
            if c.kind == 'valu':
                if sd & c.lanesel: n = max(n, 4)
                if sd & c.src: n = max(n, 2)
                if ('s', 'vcc') in sd and c.op.startswith('v_div_fmas'): n = max(n, 4)
            if ('s', 'exec') in sd:
                if c.kind == 'valu' and c.dpp: n = max(n, 5)
                if c.kind == 'valu' and (c.op.startswith(('v_readlane', 'v_readfirstlane', 'v_writelane')) or 'permlane' in c.op): n = max(n, 4)
                if c.kind == 'mfma': n = max(n, 4)
        if vd:
            if c.kind == 'valu':
                if c.dpp and vd & c.src: n = max(n, 2)
                if 'permlane' in c.op and vd & c.src: n = max(n, 2)
                if c.op.startswith(('v_readlane', 'v_readfirstlane')) and vd & c.src: n = max(n, 1)
                if p.sdwa_dst and vd & (c.src | c.dst): n = max(n, 1)
                if p.trans and vd & c.src: n = max(n, 1)
            if c.kind == 'mfma' and vd & c.src: n = max(n, 2)
            if p.trans and c.kind in ('ds', 'vmem') and vd & c.src: n = max(n, 1)
            if p.sdwa_dst and c.kind in ('ds', 'vmem') and vd & c.src: n = max(n, 1)
            if p.dot and vd & (c.src | c.dst):
                if c.op == p.op and not (vd & (regs_of(c.ops[1]) | regs_of(c.ops[2]))): pass
                else: n = max(n, 3)
    elif p.kind == 'mfma':
        D = p.dst; P = p.passes
        if p.sgemm:
            full = {2: 4, 4: 6, 8: 10, 16: 18}[P]; part = {2: 2, 4: 4, 8: 8, 16: 16}[P]
        else:
            full = {2: 5, 4: 8, 8: 12, 16: 20}[P]; part = {2: 4, 4: 6, 8: 10, 16: 18}[P]
        if c.kind == 'mfma':
            if D & (c.srcA | c.srcB): n = max(n, full)
            if D & c.srcC:
                if D == c.srcC and c.passes == P and c.sgemm == p.sgemm: n = max(n, 2 if P == 2 else 0)
                else: n = max(n, part)
            elif D & c.dst:
                n = max(n, part)
        elif c.kind in ('valu', 'ds', 'vmem'):
            if D & (c.src | c.dst): n = max(n, full)
            if c.kind == 'valu' and not p.sgemm and p.srcC & c.dst: n = max(n, {2: 1, 4: 3, 8: 7, 16: 15}[P])
    elif p.kind == 'vmem':
        if p.wide_store and p.wide_store & c.dst: n = max(n, 2)
    elif p.kind == 'salu':
        if ('s', 'm0') in p.dst and c.kind in ('vmem', 'ds') and (c.lds_dma or 'addtid' in c.op): n = max(n, 1)
    return n

MAXWS = 20

class Asm:
    def __init__(self):
        self.items = []
        self.uid = 0
    def __call__(self, text):
        for line in text.strip().split('\n'):
            line = line.strip()
            if not line or line.startswith(';'):
                continue
            if line.endswith(':'):
                self.items.append(('l', line[:-1]))
            else:
                self.items.append(('i', Ins(line)))
    def label(self, l): self.items.append(('l', l))
    def raw(self, t): self.items.append(('r', t))
    def newlabel(self, base='L'):
        self.uid += 1
        return f'{base}_{self.uid}'
    def pad(self):
        changed = True
        while changed:
            changed = False
            items = self.items
            lab = {v: i for i, (k, v) in enumerate(items) if k == 'l'}
            br = {}
            for i, (k, v) in enumerate(items):
                if k == 'i' and v.target is not None:
                    br.setdefault(lab[v.target], []).append(i)
            out = []
            for i, (k, c) in enumerate(items):
                if k == 'i' and c.kind != 'salu':
                    short = 0
                    stack = [(i - 1, 0)]; seen = {}
                    while stack:
                        j, w = stack.pop()
                        while j >= 0 and w < MAXWS:
                            if seen.get(j, 99) <= w: break
                            seen[j] = w
                            kk, p = items[j]
                            if kk == 'r': break
                            if kk == 'l':
                                for b in br.get(j, []): stack.append((b, w))
                                j -= 1
                                if j >= 0 and items[j][0] == 'i' and items[j][1].op in ('s_branch', 's_endpgm'): break
                                continue
                            n = need(p, c)
                            if n > w: short = max(short, n - w)
                            w += p.ws
                            j -= 1
                    if short:
                        changed = True
                        while short > 0:
                            q = min(short, 16)
                            out.append(('i', Ins(f's_nop {q-1}')))
                            short -= q
                out.append((k, c))
                if changed:
                    out.extend(items[i+1:])
                    break
            self.items = out
    def pad_fast(self):
        items = self.items
        out = []
        for (k, c) in items:
            if k == 'i' and c.kind != 'salu':
                w = 0; short = 0
                for j in range(len(out) - 1, -1, -1):
                    kk, p = out[j]
                    if kk == 'r': break
                    if kk == 'l':
                        if j > 0 and out[j-1][0] == 'i' and out[j-1][1].op in ('s_branch', 's_endpgm'): break
                        continue
                    n = need(p, c)
                    if n > w: short = max(short, n - w)
                    w += p.ws
                    if w >= MAXWS: break
                while short > 0:
                    q = min(short, 16)
                    out.append(('i', Ins(f's_nop {q-1}')))
                    short -= q
            out.append((k, c))
        self.items = out
        self.pad()
    def text(self):
        o = []
        for k, v in self.items:
            if k == 'i': o.append('  ' + v.text)
            elif k == 'l': o.append(v + ':')
            else: o.append(v)
        return '\n'.join(o) + '\n'
    def max_regs(self):
        mv = ms = ma = -1
        for k, v in self.items:
            if k == 'i':
                for r in v.dst | v.src:
                    if r[0] == 'v': mv = max(mv, r[1])
                    elif r[0] == 'a': ma = max(ma, r[1])
                    elif isinstance(r[1], int): ms = max(ms, r[1])
        return mv + 1, ma + 1, ms + 1

def V(b, n=1): return f'v{b}' if n == 1 else f'v[{b}:{b+n-1}]'
def S(b, n=1): return f's{b}' if n == 1 else f's[{b}:{b+n-1}]'
def A(b, n=1): return f'a{b}' if n == 1 else f'a[{b}:{b+n-1}]'
```

```python
from asmlib import *
from common import *

C_GRID = 256
XFO = 65536
SCRB = 69632
SCRW = 768
C_LDS = SCRB + 16 * SCRW
NT_MAIN = 6144
NT = N // 2

VF, VXF, VW1, VR1, VW2, VR2, VLD, VST, VMK = 1, 2, 3, 4, 5, 6, 7, 8, 9
XD = 10
M0_, M1_, M2_, M3_, M4_, M5_ = 14, 15, 16, 17, 18, 19
TB = 20
UB = 46
ACC = 72
FB = 104
NF = 6
def T(m): return TB + 2 + 6 * m
def AC(i): return ACC + 4 * i
def R4(b): return f'v[{b}:{b+3}]'
USLOT = [0, 4, 6, 10, 12, 16, 18, 22]
def U(c): return UB + USLOT[c]
def WIN(m): return UB + 4 + 6 * m
OMAP = [5, 4, 6, 7, 0, 1, 2, 3]
def O(c): return AC(OMAP[c])

class DS:
    def __init__(self, a): self.a = a; self.n = 0; self.done = 0; self.tag = {}
    def op(self, text, tag=None):
        self.a(text); self.n += 1
        if tag is not None: self.tag[tag] = self.n
    def wait(self, tag):
        i = self.tag[tag]
        if i > self.done:
            k = self.n - i
            assert k <= 15
            self.a(f's_waitcnt lgkmcnt({k})'); self.done = i

def tloads(a):
    for i in range(8):
        r = T(i >> 1) + 2 * (i & 1)
        a(f'global_load_dwordx2 v[{r}:{r+1}], v{VLD}, s[{16+2*i}:{17+2*i}]')

def body(a):
    ds = DS(a)
    frs = [('x', m) for m in range(4)] + [('q', i) for i in range(32)] + [('v', i) for i in range(32)]
    st = {'n': 0}
    def fissue():
        i = st['n']
        if i >= len(frs): return
        k, j = frs[i]
        b = FB + 4 * (i % NF)
        if k == 'x': ds.op(f'ds_read_b128 {R4(b)}, v{VXF} offset:{j*1024}', ('f', i))
        else: ds.op(f'ds_read_b128 {R4(b)}, v{VF} offset:{(j + (32 if k == "v" else 0))*1024}', ('f', i))
        st['n'] += 1
    for _ in range(NF - 1): fissue()
    a('s_waitcnt vmcnt(1)')
    fill = []
    def F(txt):
        for l in txt.strip().split('\n'):
            l = l.strip()
            if l: fill.append(l)
    def drain(n=None):
        k = 0
        while fill and (n is None or k < n):
            x = fill.pop(0)
            if callable(x): x()
            else: a(x); k += 1
    fi = {'n': 0}
    def gm(d, m, first, kind, nfill):
        i = fi['n']; fi['n'] += 1
        b = FB + 4 * (i % NF)
        fissue()
        ds.wait(('f', i))
        c = '0' if first else R4(d)
        if kind == 'A': a(f'v_mfma_f32_16x16x32_bf16 {R4(d)}, {R4(b)}, {R4(T(m))}, {c}')
        else: a(f'v_mfma_f32_16x16x32_bf16 {R4(d)}, {R4(T(m))}, {R4(b)}, {c}')
        drain(nfill)
    S_ = AC(4); RR = AC(5); X1R = AC(6); X2R = AC(7)
    RS = XD
    for m in range(4):
        for q in range(4):
            r = T(m) + q; acc = M0_ + (q & 1)
            if m == 0 and q < 2: F(f'v_dot2_f32_bf16 v{acc}, v{r}, v{r}, {"s11" if q == 0 else "0"}')
            else: F(f'v_dot2_f32_bf16 v{acc}, v{r}, v{r}, v{acc}')
    for m in range(4): gm(XD, m, m == 0, 'A', 2)
    def qcvt(c):
        w = WIN(c >> 1) + 2 * (c & 1); s = AC(c & 3)
        F(f'v_cvt_pk_bf16_f32 v{w}, v{s}, v{s+1}\nv_cvt_pk_bf16_f32 v{w+1}, v{s+2}, v{s+3}')
    def smf(m):
        a(f'v_mfma_f32_16x16x32_bf16 {R4(S_)}, {R4(T(m))}, {R4(WIN(m))}, {"0" if m == 0 else R4(S_)}')
    for c in range(8):
        if c == 1:
            fill.append(lambda: ds.op(f'ds_write_b32 v{VW1}, v{XD+3}'))
            F(f'''
            v_add_f32 v{M0_}, v{M0_}, v{M1_}
            v_mov_b32 v{M1_}, v{M0_}
            v_permlane16_swap_b32 v{M0_}, v{M1_}
            v_add_f32 v{M0_}, v{M0_}, v{M1_}
            v_mov_b32 v{M1_}, v{M0_}
            v_permlane32_swap_b32 v{M0_}, v{M1_}
            v_add_f32 v{M0_}, v{M0_}, v{M1_}
            v_mul_f32 v{M0_}, s12, v{M0_}
            v_fma_f32 v{M0_}, -v{XD}, v{XD}, v{M0_}
            v_max_f32 v{M0_}, s14, v{M0_}
            v_rsq_f32 v{RS}, v{M0_}
            ''')
            fill.append(lambda: ds.op(f'ds_write_b32 v{VW1}, v{RS} offset:256', 'wrs'))
        if c >= 2: pass
        for m in range(4):
            if m == 2 and c >= 1: qcvt(c - 1)
            gm(AC(c & 3), m, m == 0, 'A', 2)
        if c in (2, 4, 6):
            drain(); smf(c // 2 - 1)
        if c == 5:
            ds.op(f'ds_read_b128 {R4(RR)}, v{VR1} offset:256', 'rr')
            ds.op(f'ds_read_b128 {R4(X1R)}, v{VR1}', 'x1r')
            ds.op(f'ds_read_b128 {R4(X2R)}, v{VR1} offset:64', 'x2r')
    def ucvt(c):
        w = U(c); s = AC(c & 3)
        F(f'v_cvt_pk_bf16_f32 v{w}, v{s}, v{s+1}\nv_cvt_pk_bf16_f32 v{w+1}, v{s+2}, v{s+3}')
    def omf(c):
        m = c >> 1
        A_ = T(m) - 2 if (c & 1) == 0 else T(m) + 2
        B_ = U(c) if (c & 1) == 0 else U(c) - 2
        a(f'v_mfma_f32_16x16x32_bf16 {R4(O(c))}, {R4(A_)}, {R4(B_)}, 0')
    def ssq2(c):
        for r in range(4):
            if c == 0: F(f'v_mul_f32 v{M2_+r}, v{O(c)+r}, v{O(c)+r}')
            else: F(f'v_fmac_f32 v{M2_+r}, v{O(c)+r}, v{O(c)+r}')
    MX, TM = M0_, M1_
    for m in range(4):
        if m == 2: qcvt(7)
        gm(AC(0), m, m == 0, 'B', 2)
    drain(); smf(3)
    for c in range(1, 4):
        for m in range(4):
            if m == 2: ucvt(c - 1)
            if c == 1 and m == 2:
                fill.append(lambda: ds.wait('rr'))
                for r in range(4): F(f'v_mul_f32 v{S_+r}, v{S_+r}, v{RR+r}')
                F(f'''
                v_max3_f32 v{MX}, v{S_}, v{S_+1}, v{S_+2}
                v_max_f32 v{MX}, v{MX}, v{S_+3}
                v_mov_b32 v{TM}, v{MX}
                v_permlane16_swap_b32 v{MX}, v{TM}
                v_max_f32 v{MX}, v{MX}, v{TM}
                v_mul_f32 v{MX}, v{MX}, v{RS}
                ''')
                for r in range(4): F(f'v_fma_f32 v{S_+r}, v{S_+r}, v{RS}, -v{MX}')
                for r in range(4): F(f'v_exp_f32 v{S_+r}, v{S_+r}')
                F(f'''
                v_add_f32 v{MX}, v{S_}, v{S_+1}
                v_add_f32 v{TM}, v{S_+2}, v{S_+3}
                v_add_f32 v{MX}, v{MX}, v{TM}
                v_mul_f32 v{S_}, v{S_}, v{RR}
                v_mov_b32 v{TM}, v{MX}
                v_mul_f32 v{S_+1}, v{S_+1}, v{RR+1}
                v_mul_f32 v{S_+2}, v{S_+2}, v{RR+2}
                v_permlane16_swap_b32 v{MX}, v{TM}
                v_add_f32 v{MX}, v{MX}, v{TM}
                v_rcp_f32 v{MX}, v{MX}
                v_mul_f32 v{S_+3}, v{S_+3}, v{RR+3}
                v_mul_f32 v{MX}, v{MX}, v{VMK}
                ''')
                for r in range(4): F(f'v_mul_f32 v{S_+r}, v{S_+r}, v{MX}')
                for sl in range(5):
                    F(f'v_cvt_pk_bf16_f32 v{TB+6*sl}, v{S_}, v{S_+1}\nv_cvt_pk_bf16_f32 v{TB+6*sl+1}, v{S_+2}, v{S_+3}')
                fill.append(lambda: ds.wait('x2r'))
                for r in range(4):
                    F(f'v_fmac_f32 v{XD+1}, v{S_+r}, v{X1R+r}\nv_fmac_f32 v{XD+2}, v{S_+r}, v{X2R+r}')
                F(f'''
                v_permlane16_swap_b32 v{XD+1}, v{XD+2}
                v_add_f32 v{XD+1}, v{XD+1}, v{XD+2}
                ''')
                fill.append(lambda: ds.op(f'ds_write_b32 v{VW2}, v{XD+1}'))
            gm(AC(c & 3), m, m == 0, 'B', 5)
    for c in range(4, 8):
        for m in range(4):
            if m == 2: ucvt(c - 1)
            if m == 0: drain()
            gm(AC(c & 3), m, m == 0, 'B', 3)
        if c == 4:
            omf(0); omf(1)
            ds.op(f'ds_read_b64 v[{XD}:{XD+1}], v{VR2}', 'md')
        if c == 5:
            drain(); omf(2); omf(3); ssq2(0); ssq2(1)
        if c == 6:
            drain(); omf(4); omf(5); ssq2(2); ssq2(3)
    drain(); omf(6)
    ssq2(4); drain(4)
    ucvt(7); ssq2(5); drain(2)
    drain(2)
    omf(7)
    drain()
    a(f'''
    s_cmp_eq_u32 s9, 0
    s_cbranch_scc1 c_nold
    v_add_u32 v{VLD}, s9, v{VLD}
    ''')
    tloads(a)
    a('c_nold:')
    ssq2(6); ssq2(7); drain()
    q0, q1, q2, q3 = M2_, M3_, M4_, M5_
    dp = 'row_mask:0xf bank_mask:'
    a(f'''
    v_add_f32_dpp v{q0}, v{q0}, v{q0} row_ror:8 {dp}0x3
    v_add_f32_dpp v{q1}, v{q1}, v{q1} row_ror:8 {dp}0x3
    v_add_f32_dpp v{q0}, v{q2}, v{q2} row_ror:8 {dp}0xc
    v_add_f32_dpp v{q1}, v{q3}, v{q3} row_ror:8 {dp}0xc
    v_add_f32_dpp v{q0}, v{q0}, v{q0} row_shl:4 {dp}0x5
    v_add_f32_dpp v{q0}, v{q1}, v{q1} row_shr:4 {dp}0xa
    v_add_f32_dpp v{q0}, v{q0}, v{q0} quad_perm:[1,0,3,2] {dp}0xf
    v_add_f32_dpp v{q0}, v{q0}, v{q0} quad_perm:[2,3,0,1] {dp}0xf
    ''')
    ds.wait('md')
    a(f'''
    v_fma_f32 v{q1}, -v{XD}, s10, v{XD+1}
    v_mul_f32 v{q0}, s12, v{q0}
    v_fma_f32 v{q0}, -v{XD}, v{XD}, v{q0}
    v_max_f32 v{q0}, 0, v{q0}
    v_add_f32 v{q0}, s14, v{q0}
    v_rsq_f32 v{q0}, v{q0}
    v_mul_f32 v{q1}, s13, v{q1}
    v_mul_f32 v{q1}, v{q1}, v{q0}
    v_max_f32_dpp v{q0}, v{q1}, v{q1} row_ror:4 {dp}0xf
    v_max_f32_dpp v{q0}, v{q0}, v{q0} row_ror:8 {dp}0xf
    v_mov_b32 v{q2}, v{q0}
    v_permlane16_swap_b32 v{q0}, v{q2}
    v_max_f32 v{q0}, v{q0}, v{q2}
    v_sub_f32 v{q1}, v{q1}, v{q0}
    v_exp_f32 v{q1}, v{q1}
    v_add_f32_dpp v{q0}, v{q1}, v{q1} row_ror:4 {dp}0xf
    v_add_f32_dpp v{q0}, v{q0}, v{q0} row_ror:8 {dp}0xf
    v_mov_b32 v{q2}, v{q0}
    v_permlane16_swap_b32 v{q0}, v{q2}
    v_add_f32 v{q0}, v{q0}, v{q2}
    v_rcp_f32 v{q0}, v{q0}
    v_mul_f32 v{q1}, v{q1}, v{q0}
    ''')
    Y = [FB + c for c in range(8)]
    for r in range(4):
        for c in range(8):
            op = 'v_mul_f32_dpp' if r == 0 else 'v_fmac_f32_dpp'
            a(f'{op} v{Y[c]}, v{q1}, v{O(c)+r} row_newbcast:{4*r} {dp}0xf')
    for c in range(4): a(f'v_permlane16_swap_b32 v{Y[c]}, v{Y[c+4]}')
    for c in range(4): a(f'v_add_f32 v{Y[c]}, v{Y[c]}, v{Y[c+4]}')
    a(f'''
    v_cvt_pk_bf16_f32 v{q2}, v{Y[0]}, v{Y[1]}
    v_cvt_pk_bf16_f32 v{q3}, v{Y[2]}, v{Y[3]}
    global_store_dwordx2 v{VST}, v[{q2}:{q3}], s[6:7]
    ''')

def gen_c():
    a = Asm()
    a(f'''
    s_cmp_ge_u32 s2, {C_GRID}
    s_cbranch_scc1 c_end
    s_load_dwordx2 s[4:5], s[0:1], 88
    s_load_dwordx2 s[6:7], s[0:1], 72
    v_lshrrev_b32 v10, 6, v0
    v_and_b32 v11, 63, v0                    ; lane
    v_readfirstlane_b32 s3, v10              ; wave
    v_lshlrev_b32 v{VF}, 4, v11
    v_and_b32 v12, 15, v11                   ; k / e'
    v_lshrrev_b32 v13, 4, v11                ; g
    v_and_b32 v14, 7, v11                    ; hop
    v_bfe_u32 v15, v11, 3, 1                 ; q
    s_mul_i32 s8, s2, 24
    s_add_u32 s8, s8, s3
    s_cmp_lt_u32 s3, 8
    s_cselect_b32 s9, 256, 0
    s_mul_i32 s15, s2, 23
    s_sub_u32 s15, {NT_MAIN - 8}, s15        ; (6144+b) - (24b+8)
    s_lshl_b32 s15, s15, 4
    s_cmp_lt_u32 s2, {NT - NT_MAIN}
    s_cselect_b32 s15, s15, 0
    s_cmp_eq_u32 s3, 8
    s_cselect_b32 s9, s15, s9
    v_mul_u32_u24 v{VLD}, {HSZ}, v14
    v_mul_u32_u24 v16, {SLB}, v13
    v_lshl_add_u32 v16, v15, 3, v16
    s_lshl_b32 s15, s8, 4
    v_add3_u32 v{VLD}, v{VLD}, v16, s15
    s_lshl_b32 s32, s3, 12
    s_add_u32 s33, s32, {OFF_W}
    v_add_u32 v16, s33, v{VF}
    s_mov_b32 m0, s32
    s_waitcnt lgkmcnt(0)
    global_load_lds_dwordx4 v16, s[4:5]
    global_load_lds_dwordx4 v16, s[4:5] offset:1024
    global_load_lds_dwordx4 v16, s[4:5] offset:2048
    global_load_lds_dwordx4 v16, s[4:5] offset:3072
    s_cmp_ge_u32 s3, 4
    s_cbranch_scc1 c_nox
    s_lshl_b32 s32, s3, 10
    s_add_u32 s32, s32, {XFO}
    s_mov_b32 m0, s32
    s_add_u32 s33, s32, {OFF_W}
    v_add_u32 v16, s33, v{VF}
    global_load_lds_dwordx4 v16, s[4:5]
    c_nox:
    s_mov_b32 s33, {OFF_W + W_S}
    s_load_dword s10, s[4:5], s33
    ''')
    for i in range(8):
        a(f'''
        s_add_u32 s{16+2*i}, s4, {OFF_H + 4*i*SLB}
        s_addc_u32 s{17+2*i}, s5, 0
        ''')
    tloads(a)
    a(f'''
    s_mov_b32 s11, {f32hex(32e-5)}
    s_mov_b32 s12, {f32hex(1.0/128)}
    s_mov_b32 s13, {f32hex(math.log2(math.e))}
    s_mov_b32 s14, {f32hex(1e-5)}
    s_mul_i32 s32, s3, {SCRW}
    s_add_u32 s32, s32, {SCRB}
    s_add_u32 s33, s32, 512
    v_add_u32 v{VXF}, {XFO}, v{VF}
    v_lshl_add_u32 v{VW1}, v11, 2, s32
    v_lshl_add_u32 v{VR1}, v13, 4, s32
    v_lshrrev_b32 v16, 2, v11
    v_lshl_add_u32 v{VR2}, v16, 3, s33
    v_lshrrev_b32 v16, 5, v11                ; g>>1
    v_xor_b32 v16, v16, v15
    v_cmp_eq_u32 vcc, 0, v16
    v_cndmask_b32 v{VMK}, 0, 1.0, vcc
    v_lshl_add_u32 v16, v16, 7, s33
    v_lshl_add_u32 v16, v12, 3, v16
    v_and_b32 v17, 1, v13
    v_lshl_add_u32 v{VW2}, v17, 2, v16
    s_lshl_b32 s15, s8, 9
    v_lshl_add_u32 v{VST}, v11, 3, s15
    v_and_b32 v16, 1, v11
    v_lshlrev_b32 v16, 4, v16
    v_mov_b32 v17, 0x3f80
    v_lshlrev_b32 v16, v16, v17
    v_lshrrev_b32 v17, 1, v12
    v_lshlrev_b32 v18, 1, v13
    v_cmp_eq_u32 vcc, v17, v18
    v_cndmask_b32 v{UB+2}, 0, v16, vcc
    v_add_u32 v18, 1, v18
    v_cmp_eq_u32 vcc, v17, v18
    v_cndmask_b32 v{UB+3}, 0, v16, vcc
    ''')
    for k in range(1, 4):
        a(f'v_mov_b32 v{UB+2+6*k}, v{UB+2}\nv_mov_b32 v{UB+3+6*k}, v{UB+3}')
    a('''
    s_waitcnt vmcnt(8) lgkmcnt(0)
    s_barrier
    s_waitcnt vmcnt(0)
    c_loop:
    ''')
    body(a)
    a(f'''
    s_cmp_eq_u32 s9, 0
    s_cbranch_scc1 c_end
    s_lshl_b32 s9, s9, 5
    v_add_u32 v{VST}, s9, v{VST}
    s_mov_b32 s9, 0
    s_branch c_loop
    c_end:
    s_endpgm
    ''')
    return a
```

```python
from asmlib import *
from common import *

H_GRID = 256
SCR = SLB
H_LDS = SLB + 16 * 1024
BUF = 32; SA = 64; SB = 96; ACC = 12; AC = 8
PF = 3
NBUF = 4
SPIN = 1 << 18

def blk_reads(a, S, j):
    b = BUF + 8 * (j % NBUF)
    for t in range(4):
        a(f'v_lshlrev_b32_sdwa v{b+2*t}, v7, v{S+2*j+(t>>1)} dst_sel:DWORD dst_unused:UNUSED_PAD src0_sel:DWORD src1_sel:WORD_{t&1}')
    for t in range(4):
        a(f'ds_read_b64 v[{b+2*t}:{b+2*t+1}], v{b+2*t}')

def blk_mfma(a, j):
    b = BUF + 8 * (j % NBUF)
    d = f'v[{ACC}:{ACC+3}]'
    a(f'v_mfma_f32_16x16x32_bf16 {d}, v[{AC}:{AC+3}], v[{b}:{b+3}], {d}')
    a(f'v_mfma_f32_16x16x32_bf16 {d}, v[{AC}:{AC+3}], v[{b+4}:{b+7}], {d}')

def gather(a, tag, S, sm, vdis, vst):
    for r in range(4): a(f'v_mov_b32 v{ACC+r}, 0')
    order = [12, 11, 13, 10, 14, 9, 15, 8]
    for nb in order:
        a(f'''
        s_cmp_eq_u32 s{sm}, {4*nb}
        s_cbranch_scc1 {tag}_e{nb}
        ''')
    for nb in [16] + order:
        if nb != 16: a(f'{tag}_e{nb}:')
        for j in range(nb - 1, nb - 1 - PF, -1):
            blk_reads(a, S, j)
        a(f's_branch {tag}_p{nb-1-PF}')
    for j in range(15 - PF, -1, -1):
        a(f'{tag}_p{j}:')
        blk_reads(a, S, j)
        a(f's_waitcnt lgkmcnt({4*PF})')
        blk_mfma(a, j + PF)
    for j in range(PF - 1, -1, -1):
        a(f's_waitcnt lgkmcnt({4*j})')
        blk_mfma(a, j)
    a(f'''
    s_cmp_lg_u32 s{sm+2}, 0
    s_cbranch_scc1 {tag}_ovf
    {tag}_fin:
    v_mul_f32 v20, v{ACC}, v{vdis}
    v_mul_f32 v21, v{ACC+1}, v{vdis}
    v_mul_f32 v22, v{ACC+2}, v{vdis}
    v_mul_f32 v23, v{ACC+3}, v{vdis}
    v_cvt_pk_bf16_f32 v24, v20, v21
    v_cvt_pk_bf16_f32 v25, v22, v23
    v_lshlrev_b32 v20, 16, v24
    v_and_b32 v21, 0xffff0000, v24
    v_lshlrev_b32 v22, 16, v25
    v_and_b32 v23, 0xffff0000, v25
    v_mul_f32 v20, v20, v{vdis}
    v_mul_f32 v21, v21, v{vdis}
    v_mul_f32 v22, v22, v{vdis}
    v_mul_f32 v23, v23, v{vdis}
    v_cvt_pk_bf16_f32 v26, v20, v21
    v_cvt_pk_bf16_f32 v27, v22, v23
    s_mov_b64 vcc, s[32:33]
    v_cndmask_b32_dpp v28, v24, v26, vcc quad_perm:[1,0,3,2] row_mask:0xf bank_mask:0xf
    v_cndmask_b32_dpp v29, v25, v27, vcc quad_perm:[1,0,3,2] row_mask:0xf bank_mask:0xf
    s_mov_b64 vcc, s[34:35]
    v_cndmask_b32_dpp v30, v26, v24, vcc quad_perm:[1,0,3,2] row_mask:0xf bank_mask:0xf
    v_cndmask_b32_dpp v31, v27, v25, vcc quad_perm:[1,0,3,2] row_mask:0xf bank_mask:0xf
    global_store_dwordx4 v{vst}, v[28:31], s[28:29] sc1
    ''')

def overflow(a, tag, sm):
    a(f'''
    {tag}_ovf:
    s_lshl_b32 s36, s12, 10
    s_add_u32 s36, s36, {SCR}
    v_lshl_add_u32 v20, v1, 4, s36
    v_mov_b32 v24, 0
    v_mov_b32 v25, 0
    v_mov_b32 v26, 0
    v_mov_b32 v27, 0
    ds_write_b128 v20, v[24:27]
    s_lshl_b32 s37, s{sm+1}, 2
    s_add_u32 s37, s37, {OFF_OVF}
    v_lshl_add_u32 v21, v1, 2, s37
    s_mov_b32 s38, s{sm+2}                   ; remaining
    {tag}_ol:
    v_cmp_gt_u32 vcc, s38, v1
    s_and_b64 exec, vcc, vcc
    global_load_dword v22, v21, s[4:5]
    s_waitcnt vmcnt(0)
    v_lshrrev_b32 v23, 16, v22
    v_lshlrev_b32 v23, 3, v23
    ds_read_b64 v[24:25], v23
    v_bfe_u32 v22, v22, 6, 6
    v_lshl_add_u32 v22, v22, 4, s36
    s_waitcnt lgkmcnt(0)
    v_lshlrev_b32 v26, 16, v24
    v_and_b32 v27, 0xffff0000, v24
    v_lshlrev_b32 v28, 16, v25
    v_and_b32 v29, 0xffff0000, v25
    ds_add_f32 v22, v26
    ds_add_f32 v22, v27 offset:4
    ds_add_f32 v22, v28 offset:8
    ds_add_f32 v22, v29 offset:12
    s_mov_b64 exec, -1
    v_add_u32 v21, 256, v21
    s_waitcnt lgkmcnt(0)
    s_sub_u32 s38, s38, 64
    s_cbranch_scc1 {tag}_od
    s_cmp_lg_u32 s38, 0
    s_cbranch_scc1 {tag}_ol
    {tag}_od:
    ds_read_b128 v[24:27], v20
    s_waitcnt lgkmcnt(0)
    v_add_f32 v{ACC}, v{ACC}, v24
    v_add_f32 v{ACC+1}, v{ACC+1}, v25
    v_add_f32 v{ACC+2}, v{ACC+2}, v26
    v_add_f32 v{ACC+3}, v{ACC+3}, v27
    s_branch {tag}_fin
    ''')

def gen_h():
    a = Asm()
    a(f'''
    s_cmp_ge_u32 s2, {H_GRID}
    s_cbranch_scc1 h_end
    s_load_dwordx2 s[4:5], s[0:1], 88
    s_load_dwordx2 s[6:7], s[0:1], 24
    v_lshrrev_b32 v2, 6, v0
    v_and_b32 v1, 63, v0
    v_readfirstlane_b32 s12, v2              ; wave
    s_and_b32 s8, s2, 7
    s_lshl_b32 s8, s8, 2
    s_bfe_u32 s3, s2, 0x20003
    s_add_u32 s8, s8, s3                     ; slice
    s_lshr_b32 s9, s2, 5                     ; partition
    s_mul_i32 s10, s9, 49
    s_add_u32 s11, s10, 49
    s_lshr_b32 s10, s10, 1                   ; g0
    s_lshr_b32 s11, s11, 1                   ; g1
    s_add_u32 s13, s10, s12                  ; group A
    s_add_u32 s14, s13, 16                   ; group B
    s_cmp_lt_u32 s14, s11
    s_cselect_b32 s15, 1, 0
    s_cselect_b32 s14, s14, s13
    s_mul_i32 s25, s8, {SLB}
    s_lshr_b32 s3, s12, 1
    s_and_b32 s36, s12, 1
    s_add_u32 s37, s3, s36
    s_mul_i32 s37, s37, 49
    s_lshr_b32 s37, s37, 1
    s_lshl_b32 s37, s37, 9
    s_mul_i32 s36, s36, 6144
    s_sub_u32 s37, s37, s36
    v_lshl_add_u32 v3, v1, 4, s37
    s_add_u32 s37, s25, {OFF_G + 3072}
    v_add_u32 v2, s37, v3
    s_lshl_b32 s36, s8, 3
    s_add_u32 s37, s36, s3
    s_lshl_b32 s37, s37, 7
    s_add_u32 s37, s37, {OFF_FLAG}
    v_mov_b32 v4, s37
    s_add_u32 s37, s36, s9
    s_lshl_b32 s37, s37, 7
    s_add_u32 s37, s37, {OFF_FLAG}
    v_mov_b32 v5, s37
    s_lshl_b32 s36, s13, 4
    s_lshl_b32 s37, s14, 4
    s_add_u32 s36, s36, {OFF_META}
    s_add_u32 s37, s37, {OFF_META}
    s_mov_b32 s24, 0
    s_and_b32 s39, s12, 3
    v_lshl_add_u32 v20, s13, 6, v1           ; node A
    v_lshl_add_u32 v21, s14, 6, v1           ; node B
    v_min_u32 v22, {N-1}, v20
    v_min_u32 v23, {N-1}, v21
    v_lshlrev_b32 v22, 1, v22
    v_lshlrev_b32 v23, 1, v23
    s_lshl_b32 s40, s13, 13
    s_lshl_b32 s41, s14, 13
    s_add_u32 s40, s40, {OFF_SCHED + 4096}
    s_add_u32 s41, s41, {OFF_SCHED + 4096}
    v_lshl_add_u32 v24, v1, 4, s40
    v_lshl_add_u32 v25, v1, 4, s41
    s_waitcnt lgkmcnt(0)
    s_load_dwordx4 s[16:19], s[4:5], s36
    s_load_dwordx4 s[20:23], s[4:5], s37
    s_mov_b64 s[26:27], s[4:5]
    s_add_u32 s28, s4, {HSZ}
    s_addc_u32 s29, s5, 0
    ''')
    def fill_loads(a, tag):
        for i in range(6):
            a(f'global_load_dwordx4 v[{BUF+4*i}:{BUF+3+4*i}], v2, s[26:27] offset:{i*1024-3072} sc1')
        a(f'''
        s_cmp_lg_u32 s39, 2
        s_cbranch_scc1 {tag}_n7
        s_mov_b32 exec_hi, 0
        global_load_dwordx4 v[{BUF+24}:{BUF+27}], v2, s[26:27] offset:3072 sc1
        s_mov_b32 exec_hi, -1
        {tag}_n7:
        ''')
    fill_loads(a, 'hf0')
    a(f'''
    global_load_ushort v16, v22, s[6:7]
    global_load_ushort v17, v23, s[6:7]
    ''')
    for q in range(8):
        a(f'global_load_dwordx4 v[{SA+4*q}:{SA+3+4*q}], v24, s[4:5] offset:{q*1024-4096}')
    for q in range(8):
        a(f'global_load_dwordx4 v[{SB+4*q}:{SB+3+4*q}], v25, s[4:5] offset:{q*1024-4096}')
    a(f'''
    v_and_b32 v26, 15, v1
    v_lshrrev_b32 v27, 4, v1
    v_lshrrev_b32 v28, 2, v26
    v_cmp_eq_u32 vcc, v27, v28
    v_and_b32 v28, 1, v1
    v_lshlrev_b32 v28, 4, v28
    v_mov_b32 v29, 0x3f80
    v_lshlrev_b32 v29, v28, v29
    v_cndmask_b32 v29, 0, v29, vcc
    v_and_b32 v28, 2, v1
    v_cmp_eq_u32 vcc, 0, v28
    v_cndmask_b32 v{AC}, 0, v29, vcc
    v_cndmask_b32 v{AC+1}, v29, 0, vcc
    v_mov_b32 v{AC+2}, v{AC}
    v_mov_b32 v{AC+3}, v{AC+1}
    v_mov_b32 v7, 3
    s_mov_b32 s32, 0x55555555
    s_mov_b32 s33, 0x55555555
    s_not_b64 s[34:35], s[32:33]
    v_mov_b32 v26, {OFF_H}
    v_mov_b32 v27, {OFF_G}
    v_cndmask_b32 v26, v26, v27, s[32:33]
    v_add_u32 v26, s25, v26
    v_and_b32 v27, -2, v20
    v_lshl_add_u32 v18, v27, 3, v26
    v_and_b32 v27, -2, v21
    v_lshl_add_u32 v19, v27, 3, v26
    s_waitcnt vmcnt(16)
    v_lshlrev_b32 v16, 16, v16
    v_lshlrev_b32 v17, 16, v17
    v_cmp_gt_u32 vcc, {N}, v20
    v_cndmask_b32 v16, 0, v16, vcc
    v_cmp_gt_u32 vcc, {N}, v21
    v_cndmask_b32 v17, 0, v17, vcc
    s_branch h_fillw
    h_loop:
    s_mov_b32 s30, {SPIN}
    h_poll:
    global_load_dword v6, v4, s[4:5] sc1
    s_waitcnt vmcnt(0)
    v_readfirstlane_b32 s31, v6
    s_cmp_ge_u32 s31, s24
    s_cbranch_scc1 h_go
    s_sleep 1
    s_sub_u32 s30, s30, 1
    s_cbranch_scc0 h_poll
    h_go:
    ''')
    fill_loads(a, 'hf1')
    a('s_waitcnt vmcnt(0)')
    a('h_fillw:')
    for i in range(6):
        a(f'ds_write_b128 v3, v[{BUF+4*i}:{BUF+3+4*i}] offset:{i*1024}')
    a(f'''
    s_cmp_lg_u32 s39, 2
    s_cbranch_scc1 h_w7
    s_mov_b32 exec_hi, 0
    ds_write_b128 v3, v[{BUF+24}:{BUF+27}] offset:6144
    s_mov_b32 exec_hi, -1
    h_w7:
    s_waitcnt vmcnt(0) lgkmcnt(0)
    s_barrier
    ''')
    gather(a, 'ga', SA, 16, 16, 18)
    a('''
    s_cmp_eq_u32 s15, 0
    s_cbranch_scc1 h_nob
    ''')
    gather(a, 'gb', SB, 20, 17, 19)
    a(f'''
    h_nob:
    s_add_u32 s24, s24, 1
    s_cmp_eq_u32 s24, 7
    s_cbranch_scc1 h_end
    s_mov_b64 s[26:27], s[28:29]
    s_add_u32 s28, s28, {HSZ}
    s_addc_u32 s29, s29, 0
    v_mov_b32 v6, s24
    s_waitcnt vmcnt(0)
    s_barrier
    s_cmp_lg_u32 s12, 0
    s_cbranch_scc1 h_loop
    s_mov_b64 exec, 1
    global_store_dword v5, v6, s[4:5] sc1
    s_mov_b64 exec, -1
    s_branch h_loop
    ''')
    overflow(a, 'ga', 16)
    overflow(a, 'gb', 20)
    a('h_end:')
    a('s_endpgm')
    return a
```

```python
from asmlib import *
from common import *

K1_W = 3
K1_SORT0 = K1_W
K1_TR0 = K1_SORT0 + NCH
K1_GRID = K1_TR0 + NG
K1_LDS = 2 * 128 * 272 + 1024
RS = 272
WB = 128 * RS
RM = 2 * WB

def xg_reduce(a, v, t):
    a(f'''
    v_mov_b32 v{t}, v{v}
    v_permlane16_swap_b32 v{v}, v{t}
    v_add_f32 v{v}, v{v}, v{t}
    v_mov_b32 v{t}, v{v}
    v_permlane32_swap_b32 v{v}, v{t}
    v_add_f32 v{v}, v{v}, v{t}
    ''')

def gen_k1():
    a = Asm()
    a(f'''
    s_cmp_ge_u32 s2, {K1_GRID}
    s_cbranch_scc1 k1_end
    s_load_dwordx16 s[8:23], s[0:1], 0
    s_load_dwordx2 s[24:25], s[0:1], 64
    s_load_dwordx2 s[26:27], s[0:1], 88
    s_cmp_ge_u32 s2, {K1_TR0}
    s_cbranch_scc1 k1_tr
    s_cmp_lt_u32 s2, {K1_SORT0}
    s_cbranch_scc1 k1_w
    ''')
    HIST = 0; START = 1024; SORTED = 2048
    a(f'''
    s_sub_u32 s3, s2, {K1_SORT0}
    s_mul_i32 s4, s3, {CH*4}
    v_lshlrev_b32 v1, 4, v0
    v_add_u32 v2, s4, v1
    v_lshlrev_b32 v3, 2, v0
    v_mov_b32 v4, 0
    v_mov_b32 v5, 1
    v_cmp_gt_u32 vcc, {CH//4}, v0
    s_mov_b64 s[28:29], vcc
    v_cmp_gt_u32 vcc, 256, v0
    s_and_saveexec_b64 s[30:31], vcc
    s_cbranch_execz k1s_a
    ds_write_b32 v3, v4 offset:{HIST}
    k1s_a:
    s_mov_b64 exec, s[28:29]
    s_waitcnt lgkmcnt(0)
    s_cbranch_execz k1s_b
    global_load_dwordx4 v[8:11], v2, s[10:11]
    global_load_dwordx4 v[12:15], v2, s[12:13]
    k1s_b:
    s_barrier
    s_cbranch_execz k1s_c
    s_waitcnt vmcnt(0)
    ''')
    for e in range(4):
        a(f'''
        v_lshrrev_b32 v{16+e}, 4, v{12+e}
        v_and_b32 v{16+e}, 0x3fc, v{16+e}
        ds_add_rtn_u32 v{20+e}, v{16+e}, v5 offset:{HIST}
        v_sub_u32 v24, v{8+e}, v{12+e}
        v_and_b32 v24, 31, v24
        v_and_b32 v25, 63, v{12+e}
        v_lshl_or_b32 v24, v25, 6, v24
        v_and_b32 v25, 32, v{12+e}
        v_lshl_or_b32 v24, v25, 10, v24
        v_lshl_or_b32 v{8+e}, v{8+e}, 16, v24
        ''')
    a(f'''
    s_waitcnt lgkmcnt(0)
    k1s_c:
    s_mov_b64 exec, -1
    s_barrier
    v_and_b32 v6, 63, v0
    v_lshlrev_b32 v6, 4, v6
    ds_read_b128 v[24:27], v6 offset:{HIST}
    s_waitcnt lgkmcnt(0)
    v_add_u32 v29, v24, v25
    v_add_u32 v30, v29, v26
    v_add_u32 v31, v30, v27
    v_mov_b32 v32, v31
    v_add_u32_dpp v32, v32, v32 row_shr:1 row_mask:0xf bank_mask:0xf bound_ctrl:0
    v_add_u32_dpp v32, v32, v32 row_shr:2 row_mask:0xf bank_mask:0xf bound_ctrl:0
    v_add_u32_dpp v32, v32, v32 row_shr:4 row_mask:0xf bank_mask:0xf bound_ctrl:0
    v_add_u32_dpp v32, v32, v32 row_shr:8 row_mask:0xf bank_mask:0xf bound_ctrl:0
    v_add_u32_dpp v32, v32, v32 row_bcast:15 row_mask:0xa bank_mask:0xf
    v_add_u32_dpp v32, v32, v32 row_bcast:31 row_mask:0xc bank_mask:0xf
    v_sub_u32 v36, v32, v31
    v_add_u32 v37, v36, v24
    v_add_u32 v38, v36, v29
    v_add_u32 v39, v36, v30
    ds_write_b128 v6, v[36:39] offset:{START}
    v_lshl_or_b32 v40, v37, 16, v36
    v_lshl_or_b32 v41, v38, 16, v37
    v_lshl_or_b32 v42, v39, 16, v38
    v_lshl_or_b32 v43, v32, 16, v39
    v_cmp_gt_u32 vcc, 64, v0
    s_and_saveexec_b64 s[30:31], vcc
    s_cbranch_execz k1s_d
    s_lshl_b32 s5, s3, 10
    s_add_u32 s5, s5, {OFF_OFFS}
    v_add_u32 v7, s5, v6
    global_store_dwordx4 v7, v[40:43], s[26:27]
    k1s_d:
    s_mov_b64 exec, s[28:29]
    s_waitcnt lgkmcnt(0)
    s_cbranch_execz k1s_e
    ''')
    for e in range(4):
        a(f'ds_read_b32 v{24+e}, v{16+e} offset:{START}')
    for e in range(4):
        a(f'''
        s_waitcnt lgkmcnt({3-e})
        v_add_lshl_u32 v{24+e}, v{24+e}, v{20+e}, 2
        ''')
    for e in range(4):
        a(f'ds_write_b32 v{24+e}, v{8+e} offset:{SORTED}')
    a(f'''
    s_waitcnt lgkmcnt(0)
    k1s_e:
    s_barrier
    s_cbranch_execz k1_end
    ds_read_b128 v[8:11], v1 offset:{SORTED}
    v_add_u32 v2, {OFF_EDG}, v2
    s_waitcnt lgkmcnt(0)
    global_store_dwordx4 v2, v[8:11], s[26:27]
    s_endpgm
    ''')
    a(f'''
    k1_tr:
    s_sub_u32 s3, s2, {K1_TR0}
    v_and_b32 v1, 63, v0
    v_lshrrev_b32 v2, 6, v0
    v_lshl_add_u32 v3, s3, 6, v1          ; node
    v_lshlrev_b32 v4, 8, v3
    v_lshl_add_u32 v4, v2, 5, v4
    v_lshlrev_b32 v5, 1, v3
    v_lshrrev_b32 v6, 2, v2
    v_and_b32 v7, 3, v2
    v_lshl_add_u32 v6, v6, 4, v7          ; slice 16(w>>2)+(w&3)
    v_mul_u32_u24 v6, {SLB}, v6
    v_lshl_add_u32 v6, v3, 3, v6
    s_mov_b32 s4, 0x05040100
    s_mov_b32 s5, 0x07060302
    ''')
    for r in range(8, 17): a(f'v_mov_b32 v{r}, 0')
    a(f'''
    v_cmp_gt_u32 vcc, {N}, v3
    s_and_saveexec_b64 s[30:31], vcc
    s_waitcnt lgkmcnt(0)
    s_cbranch_execz k1t_a
    global_load_dwordx4 v[8:11], v4, s[8:9]
    global_load_dwordx4 v[12:15], v4, s[8:9] offset:16
    global_load_short_d16_hi v16, v5, s[14:15]
    k1t_a:
    s_mov_b64 exec, -1
    v_add_u32 v7, {4*SLB}, v6
    v_add_u32 v17, {8*SLB}, v6
    v_add_u32 v18, {12*SLB}, v6
    s_add_u32 s28, s26, {OFF_G}
    s_addc_u32 s29, s27, 0
    s_waitcnt vmcnt(0)
    ''')
    for cc in range(4):
        i = cc >> 1; sel = 's5' if cc & 1 else 's4'
        a(f'v_perm_b32 v{32+2*cc}, v{8+i+2}, v{8+i}, {sel}')
        a(f'v_perm_b32 v{33+2*cc}, v{8+i+6}, v{8+i+4}, {sel}')
    a(f'''
    global_store_dwordx2 v6, v[32:33], s[26:27]
    global_store_dwordx2 v7, v[34:35], s[26:27]
    global_store_dwordx2 v17, v[36:37], s[26:27]
    global_store_dwordx2 v18, v[38:39], s[26:27]
    ''')
    for r in range(8):
        a(f'''
        v_lshlrev_b32 v20, 16, v{32+r}
        v_and_b32 v21, 0xffff0000, v{32+r}
        v_mul_f32 v20, v20, v16
        v_mul_f32 v21, v21, v16
        v_cvt_pk_bf16_f32 v{24+r}, v20, v21
        ''')
    a(f'''
    global_store_dwordx2 v6, v[24:25], s[28:29]
    global_store_dwordx2 v7, v[26:27], s[28:29]
    global_store_dwordx2 v17, v[28:29], s[28:29]
    global_store_dwordx2 v18, v[30:31], s[28:29]
    s_endpgm
    ''')
    a(f'''
    k1_w:
    v_lshlrev_b32 v1, 4, v0
    v_bfe_u32 v2, v0, 4, 2                 ; row&3
    v_lshrrev_b32 v3, 6, v0                ; row>>2
    v_lshl_add_u32 v2, v2, 4, v3           ; position
    v_and_b32 v3, 15, v0
    v_mul_u32_u24 v2, {RS}, v2
    v_lshl_add_u32 v2, v3, 4, v2
    v_add_u32 v4, 0x2000, v1
    v_add_u32 v5, 0x4000, v1
    v_add_u32 v6, 0x6000, v1
    s_waitcnt lgkmcnt(0)
    s_cmp_eq_u32 s2, 0
    s_cselect_b64 s[28:29], s[16:17], s[20:21]
    s_cselect_b64 s[30:31], s[18:19], s[22:23]
    global_load_dwordx4 v[8:11], v1, s[28:29]
    global_load_dwordx4 v[12:15], v4, s[28:29]
    global_load_dwordx4 v[16:19], v5, s[28:29]
    global_load_dwordx4 v[20:23], v6, s[28:29]
    global_load_dwordx4 v[24:27], v1, s[30:31]
    global_load_dwordx4 v[28:31], v4, s[30:31]
    global_load_dwordx4 v[32:35], v5, s[30:31]
    global_load_dwordx4 v[36:39], v6, s[30:31]
    ''')
    for u in range(8):
        a(f'''
        s_waitcnt vmcnt({7-u})
        ds_write_b128 v2, v[{8+4*u}:{11+4*u}] offset:{(u>>2)*WB + (64*((u&3)>>1) + 8*(u&1))*RS}
        ''')
    a(f'''
    v_lshrrev_b32 v7, 6, v0
    v_and_b32 v1, 63, v0                   ; lane
    v_readfirstlane_b32 s3, v7
    v_bfe_u32 v4, v0, 4, 2                 ; g
    v_mul_u32_u24 v5, {RS}, v3             ; (l&15)*RS
    v_lshl_add_u32 v6, v4, 4, v5
    v_lshl_add_u32 v7, v4, 3, v5
    s_waitcnt lgkmcnt(0)
    s_barrier
    s_cmp_eq_u32 s2, 2
    s_cbranch_scc1 k1_wx
    s_cmp_eq_u32 s2, 1
    s_cbranch_scc1 k1_wv
    ''')
    ACC = 64
    a(f'''
    s_mul_i32 s4, s3, {16*RS}
    v_add_u32 v2, s4, v6
    ''')
    for kk in range(4):
        a(f'ds_read_b128 v[{8+4*kk}:{11+4*kk}], v2 offset:{WB + kk*64}')
        a(f'ds_read_b128 v[{24+4*kk}:{27+4*kk}], v2 offset:{kk*64}')
    for et in range(8):
        base = 40 if et % 2 == 0 else 100
        for kk in range(4):
            a(f'ds_read_b128 v[{base+4*kk}:{base+3+4*kk}], v6 offset:{WB + et*16*RS + kk*64}')
        a('s_waitcnt lgkmcnt(0)')
        for kk in range(4):
            c = '0' if (et == 0 and kk == 0) else 'v[96:99]'
            a(f'v_mfma_f32_16x16x32_bf16 v[96:99], v[{base+4*kk}:{base+3+4*kk}], v[{24+4*kk}:{27+4*kk}], {c}')
    a(f'''
    v_add_f32 v96, v96, v97
    v_add_f32 v98, v98, v99
    v_add_f32 v96, v96, v98
    ''')
    xg_reduce(a, 96, 97)
    a(f'''
    v_lshlrev_b32 v97, 2, v3
    s_lshl_b32 s4, s3, 6
    s_add_u32 s4, s4, {RM}
    v_add_u32 v97, s4, v97
    ds_write_b32 v97, v96
    s_branch k1_wmain
    ''')
    a(f'''
    k1_wv:
    s_lshr_b32 s4, s3, 2
    s_lshl_b32 s4, s4, 7
    s_and_b32 s5, s3, 3
    s_lshl_b32 s5, s5, 1
    s_add_u32 s4, s4, s5                   ; (64*(c>>2) + (c&3))*2 bytes
    v_mul_u32_u24 v2, {2*RS}, v4
    v_lshl_add_u32 v2, v3, 3, v2
    v_add_u32 v2, s4, v2
    v_add_u32 v2, {WB}, v2
    ''')
    for kk in range(4):
        for j in range(8):
            r = (40 if j % 2 == 0 else 100) + 4*kk + j//2
            a(f'ds_read_u16 v{r}, v2 offset:{(64*(kk>>1) + 16*(j&3) + 8*(kk&1) + (j>>2))*RS}')
    a('s_waitcnt lgkmcnt(0)')
    for i in range(16):
        a(f'v_lshl_or_b32 v{8+i}, v{100+i}, 16, v{40+i}')
    a('k1_wmain:')
    for rt in range(8):
        base = 40 if rt % 2 == 0 else 100
        for kk in range(4):
            a(f'ds_read_b128 v[{base+4*kk}:{base+3+4*kk}], v6 offset:{rt*16*RS + kk*64}')
        a('s_waitcnt lgkmcnt(0)')
        for kk in range(4):
            d = f'v[{ACC+4*rt}:{ACC+3+4*rt}]'
            c = '0' if kk == 0 else d
            a(f'v_mfma_f32_16x16x32_bf16 {d}, v[{base+4*kk}:{base+3+4*kk}], v[{8+4*kk}:{11+4*kk}], {c}')
    a(f'''
    s_lshl_b32 s4, s3, 12
    s_lshl_b32 s5, s2, 15
    s_add_u32 s4, s4, s5
    s_add_u32 s4, s4, {OFF_W}
    v_lshl_add_u32 v2, v1, 4, s4
    v_mov_b32 v9, 1.0
    s_cmp_eq_u32 s2, 1
    s_cbranch_scc1 k1_wfin
    s_barrier
    v_lshlrev_b32 v8, 4, v4
    v_add_u32 v8, {RM}, v8
    ''')
    for rt in range(8):
        a(f'ds_read_b128 v[{12+4*rt}:{15+4*rt}], v8 offset:{rt*64}')
    a(f'''
    v_mov_b32 v9, {f32hex(SCALE_LOG2E)}
    v_mov_b32 v10, {f32hex(-1.0/128)}
    s_waitcnt lgkmcnt(0)
    ''')
    for i in range(32):
        a(f'v_fmac_f32 v{ACC+i}, v{12+i}, v10')
    a('k1_wfin:')
    def finish(a):
        a(f'v_add_f32 v10, v{ACC}, v{ACC+1}')
        for i in range(2, 32): a(f'v_add_f32 v10, v10, v{ACC+i}')
        xg_reduce(a, 10, 11)
        a(f'v_mul_f32 v10, {f32hex(-1.0/128)}, v10')
        for i in range(32):
            a(f'v_add_f32 v{ACC+i}, v{ACC+i}, v10')
            a(f'v_mul_f32 v{ACC+i}, v{ACC+i}, v9')
        for m in range(4):
            for q in range(4):
                a(f'v_cvt_pk_bf16_f32 v{12+4*m+q}, v{ACC+8*m+2*q}, v{ACC+8*m+2*q+1}')
            a(f'global_store_dwordx4 v2, v[{12+4*m}:{15+4*m}], s[26:27] offset:{m*1024}')
    finish(a)
    a('s_endpgm')
    a(f'''
    k1_wx:
    s_cmp_lt_u32 s3, 4
    s_cbranch_scc1 k1_wx0
    v_and_b32 v8, 255, v0
    v_lshlrev_b32 v8, 7, v8
    v_add_u32 v8, {OFF_FLAG}, v8
    v_mov_b32 v9, 0
    global_store_dword v8, v9, s[26:27]
    s_endpgm
    k1_wx0:
    s_cmp_lg_u32 s3, 0
    s_cbranch_scc1 k1_end
    v_lshlrev_b32 v2, 5, v4
    ''')
    for m in range(4):
        a(f'global_load_dwordx4 v[{8+4*m}:{11+4*m}], v2, s[24:25] offset:{(m>>1)*128 + (m&1)*16}')
    a(f'''
    s_mov_b32 s4, 0x05040100
    s_mov_b32 s5, 0x07060302
    v_mov_b32 v25, 0x3c003c00
    v_and_b32 v24, 7, v0
    v_cmp_eq_u32 s[28:29], 2, v24
    v_cmp_gt_u32 vcc, 2, v24
    v_cmp_eq_u32 s[30:31], 4, v24
    s_or_b64 vcc, vcc, s[30:31]
    v_cndmask_b32 v29, 0, v25, vcc
    v_cmp_lt_u32 vcc, 3, v24               ; e'&4
    v_and_b32 v24, 3, v0
    v_cmp_eq_u32 s[30:31], 3, v24
    v_mov_b32 v26, 0
    v_lshrrev_b32 v30, 2, v3
    v_lshl_add_u32 v30, v24, 4, v30
    v_mul_u32_u24 v30, {RS}, v30
    v_lshl_add_u32 v30, v4, 5, v30
    s_waitcnt vmcnt(0)
    ''')
    for m in range(4):
        D = 8 + 8 * (m >> 1); b = m & 1
        for q in range(4):
            sel = 's5' if q >= 2 else 's4'
            i = D + b + 4 * (q & 1)
            a(f'v_perm_b32 v{ACC+4*m+q}, v{i+2}, v{i}, {sel}')
            a(f'v_cndmask_b32 v{ACC+4*m+q}, v29, v{ACC+4*m+q}, s[28:29]')
    for i in range(16):
        a(f'''
        v_lshlrev_b32 v27, 16, v{8+i}
        v_and_b32 v28, 0xffff0000, v{8+i}
        v_add_f32 v26, v26, v27
        v_add_f32 v26, v26, v28
        v_cndmask_b32 v{8+i}, v25, v{8+i}, vcc
        ''')
    xg_reduce(a, 26, 27)
    a(f'''
    v_lshlrev_b32 v2, 4, v1
    v_add_u32 v2, {OFF_W+W_X1}, v2
    v_mov_b32 v28, {OFF_W+W_S}
    global_store_dword v28, v26, s[26:27]
    s_not_b64 exec, s[30:31]
    ''')
    for m in range(4):
        a(f'global_store_dwordx4 v2, v[{ACC+4*m}:{ACC+3+4*m}], s[26:27] offset:{m*1024}')
    a('s_mov_b64 exec, -1')
    a('s_waitcnt vmcnt(0)')
    for ft in range(8):
        base = 40 if ft % 2 == 0 else 100
        for m in range(4):
            a(f'ds_read_b128 v[{base+4*m}:{base+3+4*m}], v30 offset:{WB + (64*(ft>>2) + 4*(ft&3))*RS + (m>>1)*128 + (m&1)*16}')
        a('s_waitcnt lgkmcnt(0)')
        for m in range(4):
            d = f'v[{ACC+4*ft}:{ACC+3+4*ft}]'
            c = '0' if m == 0 else d
            a(f'v_mfma_f32_16x16x32_bf16 {d}, v[{base+4*m}:{base+3+4*m}], v[{8+4*m}:{11+4*m}], {c}')
    a('s_waitcnt vmcnt(0)')
    for i in range(16):
        x, y = ACC + 2*i, ACC + 2*i + 1
        a(f'''
        v_cvt_pk_bf16_f32 v{8+i}, v{x}, v{y}
        v_lshlrev_b32 v56, 16, v{8+i}
        v_and_b32 v57, 0xffff0000, v{8+i}
        v_sub_f32 v56, v{x}, v56
        v_sub_f32 v57, v{y}, v57
        v_cvt_pk_bf16_f32 v{24+i}, v56, v57
        ''')
    for rt in range(8):
        base = 40 if rt % 2 == 0 else 100
        for m in range(4):
            a(f'ds_read_b64 v[{base+4*m}:{base+1+4*m}], v7 offset:{rt*16*RS + m*64}')
            a(f'ds_read_b64 v[{base+2+4*m}:{base+3+4*m}], v7 offset:{rt*16*RS + m*64 + 32}')
        a('s_waitcnt lgkmcnt(0)')
        for m in range(4):
            d = f'v[{ACC+4*rt}:{ACC+3+4*rt}]'
            c = '0' if m == 0 else d
            a(f'v_mfma_f32_16x16x32_bf16 {d}, v[{base+4*m}:{base+3+4*m}], v[{8+4*m}:{11+4*m}], {c}')
            a(f'v_mfma_f32_16x16x32_bf16 {d}, v[{base+4*m}:{base+3+4*m}], v[{24+4*m}:{27+4*m}], {d}')
    a('v_mov_b32 v9, 1.0')
    a('s_mov_b64 exec, s[30:31]')
    a('s_branch k1_wfin')
    a('k1_end:')
    a('s_endpgm')
    return a
```

```python
from asmlib import *
from common import *

SCH = 0; XL = 8192; LB = 16384; XC = 16896; RB = 17408; OC = 17920; WSUM = 17984; PAD = 18048
K2_LDS = 18304
PAT = 4; EPAT = 2; RSTEP = 21; SLACK = 0

def wave_red(a, op, v):
    for c in ('row_shr:1', 'row_shr:2', 'row_shr:4', 'row_shr:8'):
        a(f'{op}_dpp v{v}, v{v}, v{v} {c} row_mask:0xf bank_mask:0xf')
    a(f'{op}_dpp v{v}, v{v}, v{v} row_bcast:15 row_mask:0xa bank_mask:0xf')
    a(f'{op}_dpp v{v}, v{v}, v{v} row_bcast:31 row_mask:0xc bank_mask:0xf')

def ovf_push(a, ve, tag):
    a(f'''
    v_mov_b32 v40, 0
    v_mov_b32 v41, 1
    ds_read_b128 v[44:47], v40 offset:{WSUM}
    ds_read_b128 v[48:51], v40 offset:{WSUM+16}
    ds_read_b128 v[52:55], v40 offset:{WSUM+32}
    ds_read_b128 v[56:59], v40 offset:{WSUM+48}
    ds_add_rtn_u32 v42, v40, v41 offset:{OC}
    s_waitcnt lgkmcnt(0)
    ''')
    for r in range(44, 60, 2):
        a(f'v_add3_u32 v42, v42, v{r}, v{r+1}')
    a(f'''
    v_lshlrev_b32 v42, 2, v42
    v_add_u32 v42, {OFF_OVF}, v42
    global_store_dword v42, v{ve}, s[4:5]
    ''')

def gen_k2():
    a = Asm()
    a(f'''
    s_cmp_ge_u32 s2, {NG}
    s_cbranch_scc1 k2_end
    s_load_dwordx2 s[4:5], s[0:1], 88
    v_lshrrev_b32 v1, 2, v0                 ; chunk c
    v_and_b32 v2, 3, v0                     ; q
    s_lshl_b32 s3, s2, 2
    s_add_u32 s3, s3, {OFF_OFFS}
    v_min_u32 v5, {NCH-1}, v1
    v_lshl_add_u32 v3, v5, 10, s3
    v_mul_u32_u24 v5, {CH*4}, v5
    v_lshl_add_u32 v5, v2, 4, v5
    v_add_u32 v5, {OFF_EDG}, v5             ; edg + c*6400 + q*16
    v_lshlrev_b32 v6, 3, v0
    v_mov_b32 v8, -1
    v_mov_b32 v9, -1
    s_waitcnt lgkmcnt(0)
    global_load_dword v4, v3, s[4:5]
    ds_write_b64 v6, v[8:9] offset:{SCH}
    v_mov_b32 v10, 0
    v_mov_b32 v11, 0
    v_cmp_gt_u32 vcc, {(OC+16-LB)//8}, v0
    s_and_saveexec_b64 s[6:7], vcc
    ds_write_b64 v6, v[10:11] offset:{LB}
    s_mov_b64 exec, -1
    v_cmp_gt_u32 vcc, {NCH}, v1
    v_lshrrev_b32 v7, 6, v0
    v_lshlrev_b32 v7, 2, v7                 ; wave*4
    v_mov_b32 v30, 1
    s_waitcnt vmcnt(0)
    v_cndmask_b32 v4, 0, v4, vcc
    v_and_b32 v12, 0xffff, v4               ; start
    v_lshrrev_b32 v13, 16, v4               ; end
    v_sub_u32 v13, v13, v12
    v_lshlrev_b32 v14, 2, v2
    v_sub_u32 v13, v13, v14
    v_lshl_add_u32 v5, v12, 2, v5
    global_load_dwordx4 v[16:19], v5, s[4:5]
    v_cmp_lt_i32 vcc, 16, v13
    s_and_saveexec_b64 s[6:7], vcc
    s_cbranch_execz k2_a
    global_load_dwordx4 v[20:23], v5, s[4:5] offset:64
    k2_a:
    s_mov_b64 exec, -1
    v_cmp_eq_u32 vcc, 0, v2
    v_cndmask_b32 v12, 0, v12, vcc
    ''')
    wave_red(a, 'v_add_u32', 12)
    a(f'''
    s_mov_b32 exec_lo, 0
    s_brev_b32 exec_hi, 1
    ds_write_b32 v7, v12 offset:{WSUM}
    s_mov_b64 exec, -1
    s_waitcnt lgkmcnt(0)
    s_barrier
    k2_loop:
    s_waitcnt vmcnt(0)
    ''')
    E0 = 16; B0 = 24; A0 = 32; O0 = 36
    for k in range(4):
        a(f'''
        v_cmp_lt_i32 s[{10+2*k}:{11+2*k}], {k}, v13
        v_lshlrev_b32 v{B0+k}, v{E0+k}, v30
        v_lshrrev_b32 v{A0+k}, 3, v{E0+k}
        v_and_b32 v{A0+k}, 0x1f8, v{A0+k}
        ''')
    for k in range(4):
        a(f'''
        s_mov_b64 exec, s[{10+2*k}:{11+2*k}]
        ds_or_rtn_b32 v{O0+k}, v{A0+k}, v{B0+k} offset:{LB}
        ''')
    for k in range(4):
        a(f'''
        s_mov_b64 exec, s[{10+2*k}:{11+2*k}]
        v_and_b32 v28, 0xfff, v{E0+k}
        v_lshlrev_b32 v28, 1, v28
        v_lshrrev_b32 v29, 12, v{E0+k}
        v_and_b32 v29, 0x1f8, v29
        {'s_waitcnt lgkmcnt(0)' if k == 0 else ''}
        v_and_b32 v31, v{O0+k}, v{B0+k}
        v_cmp_eq_u32 vcc, 0, v31
        s_andn2_b64 s[{10+2*k}:{11+2*k}], exec, vcc
        s_mov_b64 exec, vcc
        ds_write_b16_d16_hi v28, v{E0+k} offset:{SCH}
        ds_or_b32 v29, v{B0+k} offset:{RB}
        s_mov_b64 exec, s[{10+2*k}:{11+2*k}]
        ds_add_rtn_u32 v{O0+k}, v{A0+k}, v30 offset:{XC}
        ''')
    for k in range(4):
        a(f'''
        s_mov_b64 exec, s[{10+2*k}:{11+2*k}]
        v_and_b32 v28, 0xfc0, v{E0+k}
        {'s_waitcnt lgkmcnt(0)' if k == 0 else ''}
        v_add_lshl_u32 v28, v28, v{O0+k}, 1
        v_cmp_gt_u32 vcc, 64, v{O0+k}
        s_andn2_b64 s[{10+2*k}:{11+2*k}], exec, vcc
        s_mov_b64 exec, vcc
        ds_write_b16_d16_hi v28, v{E0+k} offset:{XL}
        ''')
    a(f'''
    s_or_b64 s[6:7], s[10:11], s[12:13]
    s_or_b64 s[8:9], s[14:15], s[16:17]
    s_or_b64 s[6:7], s[6:7], s[8:9]
    s_cbranch_scc1 k2_slow1
    k2_b:
    s_mov_b64 exec, -1
    v_subrev_u32 v13, 16, v13
    v_cmp_lt_i32 vcc, 0, v13
    s_cbranch_vccz k2_p2
    v_mov_b32 v16, v20
    v_mov_b32 v17, v21
    v_mov_b32 v18, v22
    v_mov_b32 v19, v23
    v_add_u32 v5, 64, v5
    v_cmp_lt_i32 vcc, 16, v13
    s_and_saveexec_b64 s[6:7], vcc
    s_cbranch_execz k2_c
    global_load_dwordx4 v[20:23], v5, s[4:5] offset:64
    k2_c:
    s_mov_b64 exec, -1
    s_branch k2_loop
    k2_slow1:
    ''')
    for k in range(4):
        a(f'''
        s_mov_b64 exec, s[{10+2*k}:{11+2*k}]
        s_cbranch_execz k2_s1_{k}
        ''')
        ovf_push(a, E0+k, f's1{k}')
        a(f'k2_s1_{k}:')
    a('s_branch k2_b')
    a(f'''
    k2_p2:
    v_and_b32 v1, 63, v0                    ; lane
    v_lshlrev_b32 v2, 3, v1
    v_lshrrev_b32 v3, 4, v0                 ; node i
    v_and_b32 v4, 15, v0                    ; w
    v_lshlrev_b32 v5, 3, v3
    v_lshlrev_b32 v6, 7, v3
    v_lshl_add_u32 v7, v4, 1, v6
    s_waitcnt lgkmcnt(0)
    s_barrier
    ds_read_b32 v8, v2 offset:{LB}
    ds_read_b32 v9, v2 offset:{XC}
    ds_read_u16 v16, v7 offset:{XL}
    ds_read_u16 v17, v7 offset:{XL+32}
    ds_read_u16 v18, v7 offset:{XL+64}
    ds_read_u16 v19, v7 offset:{XL+96}
    ds_read_b64 v[10:11], v5 offset:{LB}
    ds_read_b32 v12, v5 offset:{XC}
    v_lshrrev_b32 v15, 5, v3                ; h
    v_lshlrev_b32 v15, 3, v15               ; h*8
    v_mul_u32_u24 v20, 11, v3
    v_lshl_add_u32 v20, v4, 2, v20
    v_and_b32 v20, 63, v20
    s_waitcnt lgkmcnt(6)
    v_bcnt_u32_b32 v8, v8, v9
    ''')
    for k in range(4):
        a(f'''
        s_waitcnt lgkmcnt({5-k})
        v_and_b32 v21, 31, v{16+k}
        v_lshl_add_u32 v21, v21, 4, v15
        v_lshl_or_b32 v{16+k}, v21, 16, v{16+k}
        ''')
        if k == 0:
            a(f'ds_read_b64 v[24:25], v21 offset:{RB}')
    wave_red(a, 'v_max_u32', 8)
    a(f'''
    v_readlane_b32 s10, v8, 63
    s_add_u32 s10, s10, {3+SLACK}
    s_and_b32 s10, s10, -4
    s_max_u32 s10, s10, 32
    s_min_u32 s10, s10, 64                  ; St
    s_sub_u32 s11, s10, 32
    s_lshl_b64 s[12:13], 1, s11
    s_sub_u32 s12, s12, 1
    s_mul_i32 s14, s10, {RSTEP}
    s_lshr_b32 s14, s14, 6
    s_sub_u32 s15, s14, s10
    v_mul_u32_u24 v20, s10, v20
    v_lshrrev_b32 v20, 6, v20               ; o
    s_waitcnt lgkmcnt(0)
    v_bcnt_u32_b32 v21, v10, 0
    v_sub_u32 v21, s10, v21                 ; capacity
    v_min_u32 v12, 64, v12
    v_min_u32 v13, v21, v12                 ; nx
    v_cmp_lt_u32 vcc, v13, v12
    s_cbranch_vccnz k2_slow2
    k2_d:
    v_sub_u32 v13, v13, v4
    v_mov_b32 v14, 0                        ; fails
    v_cmp_lt_i32 vcc, 0, v13
    s_and_b64 exec, vcc, vcc
    s_cbranch_execz k2_p3
    k2_round:
    v_bitop3_b32 v26, v10, v24, v24 bitop3:0x03
    v_bitop3_b32 v27, v11, v25, s12 bitop3:0x02
    v_cmp_eq_u64 vcc, 0, v[26:27]
    v_cndmask_b32 v28, 0, {EPAT}, vcc
    v_add_u32 v14, v14, v28
    v_cmp_le_u32 s[16:17], {PAT}, v14       ; force
    v_not_b32 v28, v10
    v_bitop3_b32 v29, v11, v11, s12 bitop3:0x02
    s_and_b64 vcc, vcc, s[16:17]
    v_cndmask_b32 v26, v26, v28, vcc
    v_cndmask_b32 v27, v27, v29, vcc
    v_lshlrev_b64 v[28:29], v20, -1
    v_and_b32 v28, v28, v26
    v_and_b32 v29, v29, v27
    v_cmp_ne_u64 vcc, 0, v[28:29]
    v_cndmask_b32 v26, v26, v28, vcc
    v_cndmask_b32 v27, v27, v29, vcc
    v_ffbl_b32 v28, v26
    v_ffbl_b32 v29, v27
    v_or_b32 v29, 32, v29
    v_min_u32 v28, v28, v29                 ; t or -1
    v_lshlrev_b64 v[32:33], v28, 1
    v_and_b32 v32, v32, v26
    v_and_b32 v33, v33, v27
    v_lshrrev_b32 v22, 16, v16
    v_lshrrev_b32 v23, 16, v17
    ds_or_rtn_b64 v[10:11], v5, v[32:33] offset:{LB}
    ds_or_rtn_b64 v[24:25], v22, v[32:33] offset:{RB}
    ds_read_b64 v[34:35], v23 offset:{RB}
    v_cmp_le_i32 s[18:19], 0, v28           ; has
    v_lshl_add_u32 v29, v28, 1, v6
    v_add_u32 v26, s14, v20
    v_add_u32 v27, s15, v20
    v_min_u32 v20, v26, v27
    v_add_u32 v14, 1, v14
    s_waitcnt lgkmcnt(2)
    v_and_b32 v26, v10, v32
    v_and_or_b32 v26, v11, v33, v26
    v_cmp_eq_u32 s[20:21], 0, v26           ; okl
    v_or_b32 v10, v10, v32
    v_or_b32 v11, v11, v33
    s_waitcnt lgkmcnt(0)
    v_and_b32 v26, v24, v32
    v_and_or_b32 v26, v25, v33, v26
    v_cmp_eq_u32 vcc, 0, v26                ; okr
    s_mov_b64 s[24:25], exec
    s_or_b64 s[22:23], vcc, s[16:17]
    s_and_b64 s[22:23], s[22:23], s[20:21]
    s_and_b64 s[22:23], s[22:23], s[18:19]  ; success
    s_andn2_b64 exec, s[20:21], s[22:23]
    ds_xor_b64 v5, v[32:33] offset:{LB}
    s_andn2_b64 exec, vcc, s[22:23]
    ds_xor_b64 v22, v[32:33] offset:{RB}
    s_mov_b64 exec, s[22:23]
    ds_write_b16 v29, v16 offset:{SCH}
    v_mov_b32 v16, v17
    v_mov_b32 v17, v18
    v_mov_b32 v18, v19
    v_mov_b32 v14, 0
    v_subrev_u32 v13, 16, v13
    v_mov_b32 v24, v34
    v_mov_b32 v25, v35
    s_mov_b64 exec, s[24:25]
    v_cmp_lt_i32 vcc, 0, v13
    s_and_b64 exec, vcc, vcc
    s_cbranch_execnz k2_round
    k2_p3:
    s_mov_b64 exec, -1
    v_and_b32 v8, 31, v1
    v_lshrrev_b32 v9, 5, v1
    v_lshlrev_b32 v8, 4, v8
    v_lshl_add_u32 v8, v9, 3, v8
    v_lshrrev_b32 v10, 6, v0
    v_readfirstlane_b32 s11, v10            ; wave
    s_lshr_b32 s12, s11, 3
    s_lshl_b32 s12, s12, 2
    v_add_u32 v8, s12, v8
    s_and_b32 s12, s11, 7
    s_lshl_b32 s12, s12, 2
    s_waitcnt lgkmcnt(0)
    s_barrier
    ds_read_b32 v10, v8 offset:{RB}
    v_lshlrev_b32 v9, 7, v9
    s_lshl_b32 s13, s11, 3
    v_add_u32 v9, s13, v9
    s_waitcnt lgkmcnt(0)
    v_lshrrev_b32 v10, s12, v10
    ''')
    for k in range(4):
        a(f'''
        v_and_b32 v11, {1<<k}, v10
        v_cmp_ne_u32 s[{16+2*k}:{17+2*k}], 0, v11
        ''')
    for k in range(8):
        a(f'''
        s_ff0_i32_b32 s{16+k}, s{16+k}
        s_and_b32 s{16+k}, s{16+k}, 31
        ''')
    padc = (NP - 32) * 0x10001
    a(f'''
    s_pack_ll_b32_b16 s24, s16, s18
    s_pack_ll_b32_b16 s25, s20, s22
    s_pack_ll_b32_b16 s26, s17, s19
    s_pack_ll_b32_b16 s27, s21, s23
    s_add_u32 s24, s24, {padc}
    s_add_u32 s25, s25, {padc}
    s_add_u32 s26, s26, {padc}
    s_add_u32 s27, s27, {padc}
    v_mov_b32 v12, s24
    v_mov_b32 v13, s25
    v_writelane_b32 v12, s26, 32
    v_writelane_b32 v13, s27, 32
    s_mov_b32 exec_lo, 1
    s_mov_b32 exec_hi, 1
    ds_write_b64 v9, v[12:13] offset:{PAD}
    s_mov_b64 exec, -1
    s_waitcnt lgkmcnt(0)
    s_barrier
    s_cmp_ge_u32 s11, 9
    s_cbranch_scc1 k2_end
    s_cmp_eq_u32 s11, 8
    s_cbranch_scc1 k2_meta
    v_lshlrev_b32 v1, 4, v0
    v_and_b32 v2, 7, v0                     ; q
    v_lshrrev_b32 v3, 8, v0                 ; h
    v_lshlrev_b32 v3, 7, v3
    v_lshl_add_u32 v3, v2, 4, v3
    ds_read_b128 v[8:11], v1 offset:{SCH}
    ds_read_b128 v[12:15], v3 offset:{PAD}
    v_lshrrev_b32 v4, 3, v0                 ; node
    v_lshlrev_b32 v4, 4, v4
    v_lshl_add_u32 v4, v2, 10, v4
    s_lshl_b32 s12, s2, 13
    s_add_u32 s12, s12, {OFF_SCHED}
    v_add_u32 v4, s12, v4
    v_lshlrev_b32 v2, 3, v2
    v_cmp_gt_u32 vcc, s10, v2
    s_and_b64 exec, vcc, vcc
    s_waitcnt lgkmcnt(0)
    v_pk_min_u16 v8, v8, v12
    v_pk_min_u16 v9, v9, v13
    v_pk_min_u16 v10, v10, v14
    v_pk_min_u16 v11, v11, v15
    global_store_dwordx4 v4, v[8:11], s[4:5]
    s_endpgm
    k2_meta:
    v_mov_b32 v40, 0
    ds_read_b128 v[44:47], v40 offset:{WSUM}
    ds_read_b128 v[48:51], v40 offset:{WSUM+16}
    ds_read_b128 v[52:55], v40 offset:{WSUM+32}
    ds_read_b128 v[56:59], v40 offset:{WSUM+48}
    ds_read_b32 v42, v40 offset:{OC}
    v_mov_b32 v41, 0
    v_mov_b32 v43, 0
    s_lshl_b32 s12, s2, 4
    s_add_u32 s12, s12, {OFF_META}
    v_mov_b32 v4, s12
    s_waitcnt lgkmcnt(0)
    ''')
    for r in range(44, 60, 2):
        a(f'v_add3_u32 v41, v41, v{r}, v{r+1}')
    a(f'''
    v_mov_b32 v40, s10
    s_mov_b64 exec, 1
    global_store_dwordx4 v4, v[40:43], s[4:5]
    s_endpgm
    k2_slow2:
    ''')
    for k in range(4):
        a(f'''
        v_add_u32 v21, {16*k}, v4
        v_cmp_ge_u32 vcc, v21, v13
        v_cmp_lt_u32 s[16:17], v21, v12
        s_and_b64 exec, vcc, s[16:17]
        s_cbranch_execz k2_s2_{k}
        v_lshlrev_b32 v22, 6, v3
        v_lshl_or_b32 v22, v{16+k}, 16, v22
        ''')
        ovf_push(a, 22, f's2{k}')
        a(f'''
        k2_s2_{k}:
        s_mov_b64 exec, -1
        ''')
    a('s_branch k2_d')
    a('k2_end:')
    a('s_endpgm')
    return a
```

```python
import sys
from gen import *
import k1, k2, h, c
def empty():
    a = Asm(); a('s_endpgm'); return a
for n, name in ((4, 'x4'), (8, 'x8')):
    ks = [('k1_kernel', k1.gen_k1()), ('k2_kernel', k2.gen_k2()), ('h_kernel', h.gen_h()), ('c_kernel', c.gen_c()), ('e_kernel', empty())]
    ls = [('k1_kernel', k1.K1_GRID, 512, k1.K1_LDS), ('k2_kernel', NG, 1024, k2.K2_LDS), ('h_kernel', h.H_GRID, 1024, h.H_LDS), ('c_kernel', c.C_GRID, 1024, c.C_LDS)]
    ls += [('e_kernel', 256, 64, 0)] * n
    build(ks, ls, f'exp/{name}.s'); check(f'exp/{name}.s')
ks = [('k1_kernel', k1.gen_k1()), ('k2_kernel', k2.gen_k2()), ('h_kernel', h.gen_h()), ('c_kernel', c.gen_c()), ('e_kernel', empty())]
ls = [('e_kernel', 256, 64, 0)] * 4 + [('k1_kernel', k1.K1_GRID, 512, k1.K1_LDS), ('k2_kernel', NG, 1024, k2.K2_LDS), ('h_kernel', h.H_GRID, 1024, h.H_LDS), ('c_kernel', c.C_GRID, 1024, c.C_LDS)]
build(ks, ls, f'f4.s'); check(f'f4.s')
ks = [('k1_kernel', k1.gen_k1()), ('k2_kernel', k2.gen_k2()), ('h_kernel', h.gen_h()), ('c_kernel', c.gen_c())]
ls = [('k1_kernel', k1.K1_GRID, 512, k1.K1_LDS), ('k2_kernel', NG, 1024, k2.K2_LDS), ('h_kernel', h.H_GRID, 1024, h.H_LDS), ('c_kernel', c.C_GRID, 1024, c.C_LDS), ('c_kernel', c.C_GRID, 1024, c.C_LDS)]
build(ks, ls, f'c2.s'); check(f'c2.s')
ls = [('k1_kernel', k1.K1_GRID, 512, k1.K1_LDS), ('k1_kernel', k1.K1_GRID, 512, k1.K1_LDS), ('k2_kernel', NG, 1024, k2.K2_LDS), ('h_kernel', h.H_GRID, 1024, h.H_LDS), ('c_kernel', c.C_GRID, 1024, c.C_LDS)]
build(ks, ls, f'k1x2.s'); check(f'k1x2.s')
```

```python
import re

REG_RE = re.compile(r'\b([vas])(\d+)\b|\b([vas])\[(\d+):(\d+)\]|\b(vcc_lo|vcc_hi|vcc|exec_lo|exec_hi|exec|m0|scc)\b')
TRANS = ('v_exp_', 'v_log_', 'v_rcp_', 'v_rsq_', 'v_sqrt_', 'v_sin_', 'v_cos_')

def regs_of(tok):
    out = set()
    for m in REG_RE.finditer(tok):
        if m.group(1):
            out.add((m.group(1), int(m.group(2))))
        elif m.group(3):
            for i in range(int(m.group(4)), int(m.group(5)) + 1):
                out.add((m.group(3), i))
        else:
            n = m.group(6)
            if n.startswith('vcc'): out.add(('s', 'vcc'))
            elif n.startswith('exec'): out.add(('s', 'exec'))
            elif n == 'm0': out.add(('s', 'm0'))
    return out

def split_ops(s):
    ops, cur, d = [], '', 0
    for ch in s:
        if ch == '[': d += 1
        if ch == ']': d -= 1
        if ch == ',' and d == 0:
            ops.append(cur.strip()); cur = ''
        else:
            cur += ch
    if cur.strip(): ops.append(cur.strip())
    return ops

class Ins:
    __slots__ = ('text', 'op', 'kind', 'dst', 'src', 'ops', 'dpp', 'sdwa_dst', 'trans', 'passes',
                 'srcA', 'srcB', 'srcC', 'wide_store', 'ws', 'target', 'lanesel', 'dot', 'sgemm', 'lds_dma')
    def __init__(self, text):
        self.text = text
        t = text.split(';')[0].strip()
        p = t.split(None, 1)
        op = p[0]; rest = p[1] if len(p) > 1 else ''
        self.op = op
        ops = split_ops(rest)
        self.ops = ops
        self.dpp = ('quad_perm' in rest or 'row_' in rest or 'wave_' in rest or op.endswith('_dpp'))
        self.sdwa_dst = False
        self.trans = op.startswith(TRANS)
        self.passes = 0; self.srcA = self.srcB = self.srcC = set()
        self.wide_store = set(); self.ws = 1; self.target = None; self.lanesel = set()
        self.dot = op.startswith('v_dot'); self.sgemm = False; self.lds_dma = False
        R = [regs_of(o) for o in ops]
        allr = set().union(*R) if R else set()
        dst, src = set(), set()
        if op.startswith('v_mfma') or op.startswith('v_smfmac'):
            self.kind = 'mfma'
            dst = R[0]; self.srcA = R[1]; self.srcB = R[2]
            if op.startswith('v_smfmac'):
                self.srcC = R[0]; self.srcB = R[2] | R[3]
            else:
                self.srcC = R[3]
            src = self.srcA | self.srcB | self.srcC
            if '16x16x4_f32' in op: self.passes = 8; self.sgemm = True
            elif '32x32x2_f32' in op: self.passes = 16; self.sgemm = True
            elif '32x32' in op: self.passes = 8
            elif '4x4x4' in op: self.passes = 2
            elif 'smfmac' in op and '16x16x64' in op: self.passes = 8
            else: self.passes = 4
        elif op.startswith('v_'):
            self.kind = 'valu'
            if op.startswith('v_nop'):
                pass
            elif op.startswith('v_swap') or 'permlane' in op:
                dst = R[0] | R[1]; src = set(dst)
            elif op.startswith('v_cmpx'):
                dst = R[0] | {('s', 'exec')}; src = set().union(*R[1:])
            elif '_co_' in op or op.startswith('v_div_scale') or op.startswith('v_mad_u64') or op.startswith('v_mad_i64'):
                dst = R[0] | R[1]; src = set().union(*R[2:])
            else:
                dst = R[0]; src = set().union(*R[1:]) if len(R) > 1 else set()
                if op.startswith(('v_fmac', 'v_mac', 'v_dot2c', 'v_dot4c', 'v_pk_fmac', 'v_writelane')) or self.dpp or 'dst_unused:UNUSED_PRESERVE' in rest:
                    src = src | R[0]
                if op.startswith(('v_readlane', 'v_writelane')):
                    self.lanesel = R[2]
            m = re.search(r'dst_sel:(\w+)', rest)
            if m and m.group(1) != 'DWORD': self.sdwa_dst = True
            if 'op_sel' in rest and not op.startswith('v_pk'): self.sdwa_dst = True
        elif op.startswith('ds_'):
            self.kind = 'ds'
            if op.startswith(('ds_read', 'ds_bpermute', 'ds_permute', 'ds_swizzle', 'ds_append', 'ds_consume')) or '_rtn' in op:
                dst = R[0]; src = set().union(*R[1:]) if len(R) > 1 else set()
            else:
                src = allr
        elif op.startswith(('global_', 'buffer_', 'flat_')):
            self.kind = 'vmem'
            if '_lds_' in op or re.search(r'\blds\b', rest):
                src = allr | {('s', 'm0')}; self.lds_dma = True
            elif '_load' in op:
                dst = R[0]; src = set().union(*R[1:])
                if 'd16' in op: src = src | R[0]
            elif '_atomic' in op and re.search(r'\bsc0\b', rest):
                dst = R[0]; src = set().union(*R[1:])
            else:
                src = allr
                if 'dwordx4' in op or 'dwordx3' in op:
                    self.wide_store = R[1] if op.startswith(('global', 'flat')) else R[0]
        elif op.startswith('s_'):
            self.kind = 'salu'
            if op == 's_nop':
                self.ws = int(ops[0], 0) + 1
            elif op.startswith(('s_branch', 's_cbranch')):
                self.target = ops[0]
            elif op.startswith(('s_waitcnt', 's_barrier', 's_endpgm', 's_sleep', 's_setprio', 's_cmp', 's_bitcmp', 's_sethalt', 's_setreg')):
                src = allr
            else:
                dst = R[0] if R else set(); src = set().union(*R[1:]) if len(R) > 1 else set()
                if 'saveexec' in op: dst = dst | {('s', 'exec')}
        else:
            raise ValueError('unknown instr ' + text)
        self.dst, self.src = dst, src

def vg(s): return {r for r in s if r[0] in 'va'}
def sg(s): return {r for r in s if r[0] == 's'}

def need(p, c):
    n = 0
    if p.kind == 'valu':
        sd = sg(p.dst); vd = vg(p.dst)
        if sd:
            if c.kind == 'vmem' and (sd - {('s', 'exec')}) & c.src: n = max(n, 5)
            if c.kind == 'valu':
                if sd & c.lanesel: n = max(n, 4)
                if sd & c.src: n = max(n, 2)
                if ('s', 'vcc') in sd and c.op.startswith('v_div_fmas'): n = max(n, 4)
            if ('s', 'exec') in sd:
                if c.kind == 'valu' and c.dpp: n = max(n, 5)
                if c.kind == 'valu' and (c.op.startswith(('v_readlane', 'v_readfirstlane', 'v_writelane')) or 'permlane' in c.op): n = max(n, 4)
                if c.kind == 'mfma': n = max(n, 4)
        if vd:
            if c.kind == 'valu':
                if c.dpp and vd & c.src: n = max(n, 2)
                if 'permlane' in c.op and vd & c.src: n = max(n, 2)
                if c.op.startswith(('v_readlane', 'v_readfirstlane')) and vd & c.src: n = max(n, 1)
                if p.sdwa_dst and vd & (c.src | c.dst): n = max(n, 1)
                if p.trans and vd & c.src: n = max(n, 1)
            if c.kind == 'mfma' and vd & c.src: n = max(n, 2)
            if p.trans and c.kind in ('ds', 'vmem') and vd & c.src: n = max(n, 1)
            if p.sdwa_dst and c.kind in ('ds', 'vmem') and vd & c.src: n = max(n, 1)
            if p.dot and vd & (c.src | c.dst):
                if c.op == p.op and not (vd & (regs_of(c.ops[1]) | regs_of(c.ops[2]))): pass
                else: n = max(n, 3)
    elif p.kind == 'mfma':
        D = p.dst; P = p.passes
        if p.sgemm:
            full = {2: 4, 4: 6, 8: 10, 16: 18}[P]; part = {2: 2, 4: 4, 8: 8, 16: 16}[P]
        else:
            full = {2: 5, 4: 8, 8: 12, 16: 20}[P]; part = {2: 4, 4: 6, 8: 10, 16: 18}[P]
        if c.kind == 'mfma':
            if D & (c.srcA | c.srcB): n = max(n, full)
            if D & c.srcC:
                if D == c.srcC and c.passes == P and c.sgemm == p.sgemm: n = max(n, 2 if P == 2 else 0)
                else: n = max(n, part)
            elif D & c.dst:
                n = max(n, part)
        elif c.kind in ('valu', 'ds', 'vmem'):
            if D & (c.src | c.dst): n = max(n, full)
            if c.kind == 'valu' and not p.sgemm and p.srcC & c.dst: n = max(n, {2: 1, 4: 3, 8: 7, 16: 15}[P])
    elif p.kind == 'vmem':
        if p.wide_store and p.wide_store & c.dst: n = max(n, 2)
    elif p.kind == 'salu':
        if ('s', 'm0') in p.dst and c.kind in ('vmem', 'ds') and (c.lds_dma or 'addtid' in c.op): n = max(n, 1)
    return n

MAXWS = 20

class Asm:
    def __init__(self):
        self.items = []
        self.uid = 0
        self.name = 'k'
    def __call__(self, text):
        for line in text.strip().split('\n'):
            line = line.strip()
            if not line or line.startswith(';'):
                continue
            if line.endswith(':'):
                self.items.append(('l', line[:-1]))
            else:
                self.items.append(('i', Ins(line)))
    STAMPS = False
    def stamp(self, i):
        if not Asm.STAMPS: return
        assert 0 <= i < 20
        self(f's_memrealtime s[{60+2*i}:{61+2*i}]')
        self('s_waitcnt lgkmcnt(0)')
    def stamp_if(self, i, sreg, val):
        if not Asm.STAMPS: return
        l = self.newlabel('stmp' + self.name)
        self(f's_cmp_lg_u32 s{sreg}, {val}')
        self(f's_cbranch_scc1 {l}')
        self.stamp(i)
        self(l + ':')
    def finish_stamps(self, kidx, off):
        if not Asm.STAMPS: return
        pre = Asm(); pre.name = self.name
        pre('v_lshrrev_b32 v1, 6, v0')
        pre('s_nop 1')
        pre('v_readfirstlane_b32 s59, v1')
        for i in range(1, 20): pre(f's_mov_b64 s[{60+2*i}:{61+2*i}], 0')
        pre.stamp(0)
        pre('s_memtime s[92:93]')
        pre('s_waitcnt lgkmcnt(0)')
        items = []
        lab = 'dump_' + self.name
        for k, v in self.items:
            if k == 'i' and v.op == 's_endpgm': items.append(('i', Ins(f's_branch {lab}')))
            else: items.append((k, v))
        self.items = pre.items + items
        self(lab + ':')
        self.stamp(18)
        self('s_memtime s[94:95]')
        self('s_waitcnt vmcnt(0) lgkmcnt(0)')
        self.stamp(19)
        self('s_mov_b64 exec, -1')
        self('s_load_dwordx2 s[4:5], s[0:1], 88')
        self('v_mov_b32 v1, 0')
        for i in range(20): self(f'v_writelane_b32 v1, s{60+2*i}, {i}')
        self('v_mbcnt_lo_u32_b32 v2, -1, 0')
        self('v_mbcnt_hi_u32_b32 v2, -1, v2')
        self(f's_lshl_b32 s6, s2, 4')
        self(f's_add_u32 s6, s6, s59')
        self(f's_lshl_b32 s6, s6, 7')
        self(f's_add_u32 s6, s6, {off + kidx * (2 << 20)}')
        self('v_lshl_add_u32 v2, v2, 2, s6')
        self('s_mov_b32 exec_hi, 0')
        self('s_waitcnt lgkmcnt(0)')
        self('global_store_dword v2, v1, s[4:5]')
        self('s_endpgm')
    def label(self, l): self.items.append(('l', l))
    def raw(self, t): self.items.append(('r', t))
    def newlabel(self, base='L'):
        self.uid += 1
        return f'{base}_{self.uid}'
    def pad(self):
        changed = True
        while changed:
            changed = False
            items = self.items
            lab = {v: i for i, (k, v) in enumerate(items) if k == 'l'}
            br = {}
            for i, (k, v) in enumerate(items):
                if k == 'i' and v.target is not None:
                    br.setdefault(lab[v.target], []).append(i)
            out = []
            for i, (k, c) in enumerate(items):
                if k == 'i' and c.kind != 'salu':
                    short = 0
                    stack = [(i - 1, 0)]; seen = {}
                    while stack:
                        j, w = stack.pop()
                        while j >= 0 and w < MAXWS:
                            if seen.get(j, 99) <= w: break
                            seen[j] = w
                            kk, p = items[j]
                            if kk == 'r': break
                            if kk == 'l':
                                for b in br.get(j, []): stack.append((b, w))
                                j -= 1
                                if j >= 0 and items[j][0] == 'i' and items[j][1].op in ('s_branch', 's_endpgm'): break
                                continue
                            n = need(p, c)
                            if n > w: short = max(short, n - w)
                            w += p.ws
                            j -= 1
                    if short:
                        changed = True
                        while short > 0:
                            q = min(short, 16)
                            out.append(('i', Ins(f's_nop {q-1}')))
                            short -= q
                out.append((k, c))
                if changed:
                    out.extend(items[i+1:])
                    break
            self.items = out
    def pad_fast(self):
        items = self.items
        out = []
        for (k, c) in items:
            if k == 'i' and c.kind != 'salu':
                w = 0; short = 0
                for j in range(len(out) - 1, -1, -1):
                    kk, p = out[j]
                    if kk == 'r': break
                    if kk == 'l':
                        if j > 0 and out[j-1][0] == 'i' and out[j-1][1].op in ('s_branch', 's_endpgm'): break
                        continue
                    n = need(p, c)
                    if n > w: short = max(short, n - w)
                    w += p.ws
                    if w >= MAXWS: break
                while short > 0:
                    q = min(short, 16)
                    out.append(('i', Ins(f's_nop {q-1}')))
                    short -= q
            out.append((k, c))
        self.items = out
        self.pad()
    def text(self):
        o = []
        for k, v in self.items:
            if k == 'i': o.append('  ' + v.text)
            elif k == 'l': o.append(v + ':')
            else: o.append(v)
        return '\n'.join(o) + '\n'
    def max_regs(self):
        mv = ms = ma = -1
        for k, v in self.items:
            if k == 'i':
                for r in v.dst | v.src:
                    if r[0] == 'v': mv = max(mv, r[1])
                    elif r[0] == 'a': ma = max(ma, r[1])
                    elif isinstance(r[1], int): ms = max(ms, r[1])
        return mv + 1, ma + 1, ms + 1

def V(b, n=1): return f'v{b}' if n == 1 else f'v[{b}:{b+n-1}]'
def S(b, n=1): return f's{b}' if n == 1 else f's[{b}:{b+n-1}]'
def A(b, n=1): return f'a{b}' if n == 1 else f'a[{b}:{b+n-1}]'
```

```python
from asmlib import *
from common import *

C_GRID = 256
XFO = 65536
SCRB = 69632
SCRW = 768
C_LDS = SCRB + 16 * SCRW
NT_MAIN = 6144
NT = N // 2

VF, VXF, VW1, VR1, VW2, VR2, VLD, VST, VMK = 1, 2, 3, 4, 5, 6, 7, 8, 9
XD = 10
M0_, M1_, M2_, M3_, M4_, M5_ = 14, 15, 16, 17, 18, 19
TB = 20
UB = 46
ACC = 72
FB = 104
NF = 6
def T(m): return TB + 2 + 6 * m
def AC(i): return ACC + 4 * i
def R4(b): return f'v[{b}:{b+3}]'
USLOT = [0, 4, 6, 10, 12, 16, 18, 22]
def U(c): return UB + USLOT[c]
def WIN(m): return UB + 4 + 6 * m
OMAP = [5, 4, 6, 7, 0, 1, 2, 3]
def O(c): return AC(OMAP[c])

class DS:
    def __init__(self, a): self.a = a; self.n = 0; self.done = 0; self.tag = {}
    def op(self, text, tag=None):
        self.a(text); self.n += 1
        if tag is not None: self.tag[tag] = self.n
    def wait(self, tag):
        i = self.tag[tag]
        if i > self.done:
            k = self.n - i
            assert k <= 15
            self.a(f's_waitcnt lgkmcnt({k})'); self.done = i

def tloads(a):
    for i in range(8):
        r = T(i >> 1) + 2 * (i & 1)
        a(f'global_load_dwordx2 v[{r}:{r+1}], v{VLD}, s[{16+2*i}:{17+2*i}]')

def body(a):
    ds = DS(a)
    frs = [('x', m) for m in range(4)] + [('q', i) for i in range(32)] + [('v', i) for i in range(32)]
    st = {'n': 0}
    def fissue():
        i = st['n']
        if i >= len(frs): return
        k, j = frs[i]
        b = FB + 4 * (i % NF)
        if k == 'x': ds.op(f'ds_read_b128 {R4(b)}, v{VXF} offset:{j*1024}', ('f', i))
        else: ds.op(f'ds_read_b128 {R4(b)}, v{VF} offset:{(j + (32 if k == "v" else 0))*1024}', ('f', i))
        st['n'] += 1
    for _ in range(NF - 1): fissue()
    a('s_waitcnt vmcnt(1)')
    fill = []
    def F(txt):
        for l in txt.strip().split('\n'):
            l = l.strip()
            if l: fill.append(l)
    def drain(n=None):
        k = 0
        while fill and (n is None or k < n):
            x = fill.pop(0)
            if callable(x): x()
            else: a(x); k += 1
    fi = {'n': 0}
    def gm(d, m, first, kind, nfill):
        i = fi['n']; fi['n'] += 1
        b = FB + 4 * (i % NF)
        fissue()
        ds.wait(('f', i))
        c = '0' if first else R4(d)
        if kind == 'A': a(f'v_mfma_f32_16x16x32_bf16 {R4(d)}, {R4(b)}, {R4(T(m))}, {c}')
        else: a(f'v_mfma_f32_16x16x32_bf16 {R4(d)}, {R4(T(m))}, {R4(b)}, {c}')
        drain(nfill)
    S_ = AC(4); RR = AC(5); X1R = AC(6); X2R = AC(7)
    RS = XD
    for m in range(4):
        for q in range(4):
            r = T(m) + q; acc = M0_ + (q & 1)
            if m == 0 and q < 2: F(f'v_dot2_f32_bf16 v{acc}, v{r}, v{r}, {"s11" if q == 0 else "0"}')
            else: F(f'v_dot2_f32_bf16 v{acc}, v{r}, v{r}, v{acc}')
    for m in range(4): gm(XD, m, m == 0, 'A', 2)
    def qcvt(c):
        w = WIN(c >> 1) + 2 * (c & 1); s = AC(c & 3)
        F(f'v_cvt_pk_bf16_f32 v{w}, v{s}, v{s+1}\nv_cvt_pk_bf16_f32 v{w+1}, v{s+2}, v{s+3}')
    def smf(m):
        a(f'v_mfma_f32_16x16x32_bf16 {R4(S_)}, {R4(T(m))}, {R4(WIN(m))}, {"0" if m == 0 else R4(S_)}')
    for c in range(8):
        if c == 1:
            fill.append(lambda: ds.op(f'ds_write_b32 v{VW1}, v{XD+3}'))
            F(f'''
            v_add_f32 v{M0_}, v{M0_}, v{M1_}
            v_mov_b32 v{M1_}, v{M0_}
            v_permlane16_swap_b32 v{M0_}, v{M1_}
            v_add_f32 v{M0_}, v{M0_}, v{M1_}
            v_mov_b32 v{M1_}, v{M0_}
            v_permlane32_swap_b32 v{M0_}, v{M1_}
            v_add_f32 v{M0_}, v{M0_}, v{M1_}
            v_mul_f32 v{M0_}, s12, v{M0_}
            v_fma_f32 v{M0_}, -v{XD}, v{XD}, v{M0_}
            v_max_f32 v{M0_}, s14, v{M0_}
            v_rsq_f32 v{RS}, v{M0_}
            ''')
            fill.append(lambda: ds.op(f'ds_write_b32 v{VW1}, v{RS} offset:256', 'wrs'))
        if c >= 2: pass
        for m in range(4):
            if m == 2 and c >= 1: qcvt(c - 1)
            gm(AC(c & 3), m, m == 0, 'A', 2)
        if c in (2, 4, 6):
            drain(); smf(c // 2 - 1)
        if c == 5:
            ds.op(f'ds_read_b128 {R4(RR)}, v{VR1} offset:256', 'rr')
            ds.op(f'ds_read_b128 {R4(X1R)}, v{VR1}', 'x1r')
            ds.op(f'ds_read_b128 {R4(X2R)}, v{VR1} offset:64', 'x2r')
    def ucvt(c):
        w = U(c); s = AC(c & 3)
        F(f'v_cvt_pk_bf16_f32 v{w}, v{s}, v{s+1}\nv_cvt_pk_bf16_f32 v{w+1}, v{s+2}, v{s+3}')
    def omf(c):
        m = c >> 1
        A_ = T(m) - 2 if (c & 1) == 0 else T(m) + 2
        B_ = U(c) if (c & 1) == 0 else U(c) - 2
        a(f'v_mfma_f32_16x16x32_bf16 {R4(O(c))}, {R4(A_)}, {R4(B_)}, 0')
    def ssq2(c):
        for r in range(4):
            if c == 0: F(f'v_mul_f32 v{M2_+r}, v{O(c)+r}, v{O(c)+r}')
            else: F(f'v_fmac_f32 v{M2_+r}, v{O(c)+r}, v{O(c)+r}')
    MX, TM = M0_, M1_
    for m in range(4):
        if m == 2: qcvt(7)
        gm(AC(0), m, m == 0, 'B', 2)
    drain(); smf(3)
    for c in range(1, 4):
        for m in range(4):
            if m == 2: ucvt(c - 1)
            if c == 1 and m == 2:
                fill.append(lambda: ds.wait('rr'))
                for r in range(4): F(f'v_mul_f32 v{S_+r}, v{S_+r}, v{RR+r}')
                F(f'''
                v_max3_f32 v{MX}, v{S_}, v{S_+1}, v{S_+2}
                v_max_f32 v{MX}, v{MX}, v{S_+3}
                v_mov_b32 v{TM}, v{MX}
                v_permlane16_swap_b32 v{MX}, v{TM}
                v_max_f32 v{MX}, v{MX}, v{TM}
                v_mul_f32 v{MX}, v{MX}, v{RS}
                ''')
                for r in range(4): F(f'v_fma_f32 v{S_+r}, v{S_+r}, v{RS}, -v{MX}')
                for r in range(4): F(f'v_exp_f32 v{S_+r}, v{S_+r}')
                F(f'''
                v_add_f32 v{MX}, v{S_}, v{S_+1}
                v_add_f32 v{TM}, v{S_+2}, v{S_+3}
                v_add_f32 v{MX}, v{MX}, v{TM}
                v_mul_f32 v{S_}, v{S_}, v{RR}
                v_mov_b32 v{TM}, v{MX}
                v_mul_f32 v{S_+1}, v{S_+1}, v{RR+1}
                v_mul_f32 v{S_+2}, v{S_+2}, v{RR+2}
                v_permlane16_swap_b32 v{MX}, v{TM}
                v_add_f32 v{MX}, v{MX}, v{TM}
                v_rcp_f32 v{MX}, v{MX}
                v_mul_f32 v{S_+3}, v{S_+3}, v{RR+3}
                v_mul_f32 v{MX}, v{MX}, v{VMK}
                ''')
                for r in range(4): F(f'v_mul_f32 v{S_+r}, v{S_+r}, v{MX}')
                for sl in range(5):
                    F(f'v_cvt_pk_bf16_f32 v{TB+6*sl}, v{S_}, v{S_+1}\nv_cvt_pk_bf16_f32 v{TB+6*sl+1}, v{S_+2}, v{S_+3}')
                fill.append(lambda: ds.wait('x2r'))
                for r in range(4):
                    F(f'v_fmac_f32 v{XD+1}, v{S_+r}, v{X1R+r}\nv_fmac_f32 v{XD+2}, v{S_+r}, v{X2R+r}')
                F(f'''
                v_permlane16_swap_b32 v{XD+1}, v{XD+2}
                v_add_f32 v{XD+1}, v{XD+1}, v{XD+2}
                ''')
                fill.append(lambda: ds.op(f'ds_write_b32 v{VW2}, v{XD+1}'))
            gm(AC(c & 3), m, m == 0, 'B', 5)
    for c in range(4, 8):
        for m in range(4):
            if m == 2: ucvt(c - 1)
            if m == 0: drain()
            gm(AC(c & 3), m, m == 0, 'B', 3)
        if c == 4:
            omf(0); omf(1)
            ds.op(f'ds_read_b64 v[{XD}:{XD+1}], v{VR2}', 'md')
        if c == 5:
            drain(); omf(2); omf(3); ssq2(0); ssq2(1)
        if c == 6:
            drain(); omf(4); omf(5); ssq2(2); ssq2(3)
    drain(); omf(6)
    ssq2(4); drain(4)
    ucvt(7); ssq2(5); drain(2)
    drain(2)
    omf(7)
    drain()
    a(f'''
    s_cmp_eq_u32 s9, 0
    s_cbranch_scc1 c_nold
    v_add_u32 v{VLD}, s9, v{VLD}
    ''')
    tloads(a)
    a('c_nold:')
    ssq2(6); ssq2(7); drain()
    q0, q1, q2, q3 = M2_, M3_, M4_, M5_
    dp = 'row_mask:0xf bank_mask:'
    a(f'''
    v_add_f32_dpp v{q0}, v{q0}, v{q0} row_ror:8 {dp}0x3
    v_add_f32_dpp v{q1}, v{q1}, v{q1} row_ror:8 {dp}0x3
    v_add_f32_dpp v{q0}, v{q2}, v{q2} row_ror:8 {dp}0xc
    v_add_f32_dpp v{q1}, v{q3}, v{q3} row_ror:8 {dp}0xc
    v_add_f32_dpp v{q0}, v{q0}, v{q0} row_shl:4 {dp}0x5
    v_add_f32_dpp v{q0}, v{q1}, v{q1} row_shr:4 {dp}0xa
    v_add_f32_dpp v{q0}, v{q0}, v{q0} quad_perm:[1,0,3,2] {dp}0xf
    v_add_f32_dpp v{q0}, v{q0}, v{q0} quad_perm:[2,3,0,1] {dp}0xf
    ''')
    ds.wait('md')
    a(f'''
    v_fma_f32 v{q1}, -v{XD}, s10, v{XD+1}
    v_mul_f32 v{q0}, s12, v{q0}
    v_fma_f32 v{q0}, -v{XD}, v{XD}, v{q0}
    v_max_f32 v{q0}, 0, v{q0}
    v_add_f32 v{q0}, s14, v{q0}
    v_rsq_f32 v{q0}, v{q0}
    v_mul_f32 v{q1}, s13, v{q1}
    v_mul_f32 v{q1}, v{q1}, v{q0}
    v_max_f32_dpp v{q0}, v{q1}, v{q1} row_ror:4 {dp}0xf
    v_max_f32_dpp v{q0}, v{q0}, v{q0} row_ror:8 {dp}0xf
    v_mov_b32 v{q2}, v{q0}
    v_permlane16_swap_b32 v{q0}, v{q2}
    v_max_f32 v{q0}, v{q0}, v{q2}
    v_sub_f32 v{q1}, v{q1}, v{q0}
    v_exp_f32 v{q1}, v{q1}
    v_add_f32_dpp v{q0}, v{q1}, v{q1} row_ror:4 {dp}0xf
    v_add_f32_dpp v{q0}, v{q0}, v{q0} row_ror:8 {dp}0xf
    v_mov_b32 v{q2}, v{q0}
    v_permlane16_swap_b32 v{q0}, v{q2}
    v_add_f32 v{q0}, v{q0}, v{q2}
    v_rcp_f32 v{q0}, v{q0}
    v_mul_f32 v{q1}, v{q1}, v{q0}
    ''')
    Y = [FB + c for c in range(8)]
    for r in range(4):
        for c in range(8):
            op = 'v_mul_f32_dpp' if r == 0 else 'v_fmac_f32_dpp'
            a(f'{op} v{Y[c]}, v{q1}, v{O(c)+r} row_newbcast:{4*r} {dp}0xf')
    for c in range(4): a(f'v_permlane16_swap_b32 v{Y[c]}, v{Y[c+4]}')
    for c in range(4): a(f'v_add_f32 v{Y[c]}, v{Y[c]}, v{Y[c+4]}')
    a(f'''
    v_cvt_pk_bf16_f32 v{q2}, v{Y[0]}, v{Y[1]}
    v_cvt_pk_bf16_f32 v{q3}, v{Y[2]}, v{Y[3]}
    global_store_dwordx2 v{VST}, v[{q2}:{q3}], s[6:7]
    ''')

def gen_c():
    a = Asm(); a.name = 'c'
    a(f'''
    s_cmp_ge_u32 s2, {C_GRID}
    s_cbranch_scc1 c_end
    s_load_dwordx2 s[4:5], s[0:1], 88
    s_load_dwordx2 s[6:7], s[0:1], 72
    v_lshrrev_b32 v10, 6, v0
    v_and_b32 v11, 63, v0                    ; lane
    v_readfirstlane_b32 s3, v10              ; wave
    v_lshlrev_b32 v{VF}, 4, v11
    v_and_b32 v12, 15, v11                   ; k / e'
    v_lshrrev_b32 v13, 4, v11                ; g
    v_and_b32 v14, 7, v11                    ; hop
    v_bfe_u32 v15, v11, 3, 1                 ; q
    s_mul_i32 s8, s2, 24
    s_add_u32 s8, s8, s3
    s_cmp_lt_u32 s3, 8
    s_cselect_b32 s9, 256, 0
    s_mul_i32 s15, s2, 23
    s_sub_u32 s15, {NT_MAIN - 8}, s15        ; (6144+b) - (24b+8)
    s_lshl_b32 s15, s15, 4
    s_cmp_lt_u32 s2, {NT - NT_MAIN}
    s_cselect_b32 s15, s15, 0
    s_cmp_eq_u32 s3, 8
    s_cselect_b32 s9, s15, s9
    v_mul_u32_u24 v{VLD}, {HSZ}, v14
    v_mul_u32_u24 v16, {SLB}, v13
    v_lshl_add_u32 v16, v15, 3, v16
    s_lshl_b32 s15, s8, 4
    v_add3_u32 v{VLD}, v{VLD}, v16, s15
    s_lshl_b32 s32, s3, 12
    s_add_u32 s33, s32, {OFF_W}
    v_add_u32 v16, s33, v{VF}
    s_mov_b32 m0, s32
    s_waitcnt lgkmcnt(0)
    global_load_lds_dwordx4 v16, s[4:5]
    global_load_lds_dwordx4 v16, s[4:5] offset:1024
    global_load_lds_dwordx4 v16, s[4:5] offset:2048
    global_load_lds_dwordx4 v16, s[4:5] offset:3072
    s_cmp_ge_u32 s3, 4
    s_cbranch_scc1 c_nox
    s_lshl_b32 s32, s3, 10
    s_add_u32 s32, s32, {XFO}
    s_mov_b32 m0, s32
    s_add_u32 s33, s32, {OFF_W}
    v_add_u32 v16, s33, v{VF}
    global_load_lds_dwordx4 v16, s[4:5]
    c_nox:
    s_mov_b32 s33, {OFF_W + W_S}
    s_load_dword s10, s[4:5], s33
    ''')
    for i in range(8):
        a(f'''
        s_add_u32 s{16+2*i}, s4, {OFF_H + 4*i*SLB}
        s_addc_u32 s{17+2*i}, s5, 0
        ''')
    tloads(a)
    a(f'''
    s_mov_b32 s11, {f32hex(32e-5)}
    s_mov_b32 s12, {f32hex(1.0/128)}
    s_mov_b32 s13, {f32hex(math.log2(math.e))}
    s_mov_b32 s14, {f32hex(1e-5)}
    s_mul_i32 s32, s3, {SCRW}
    s_add_u32 s32, s32, {SCRB}
    s_add_u32 s33, s32, 512
    v_add_u32 v{VXF}, {XFO}, v{VF}
    v_lshl_add_u32 v{VW1}, v11, 2, s32
    v_lshl_add_u32 v{VR1}, v13, 4, s32
    v_lshrrev_b32 v16, 2, v11
    v_lshl_add_u32 v{VR2}, v16, 3, s33
    v_lshrrev_b32 v16, 5, v11                ; g>>1
    v_xor_b32 v16, v16, v15
    v_cmp_eq_u32 vcc, 0, v16
    v_cndmask_b32 v{VMK}, 0, 1.0, vcc
    v_lshl_add_u32 v16, v16, 7, s33
    v_lshl_add_u32 v16, v12, 3, v16
    v_and_b32 v17, 1, v13
    v_lshl_add_u32 v{VW2}, v17, 2, v16
    s_lshl_b32 s15, s8, 9
    v_lshl_add_u32 v{VST}, v11, 3, s15
    v_and_b32 v16, 1, v11
    v_lshlrev_b32 v16, 4, v16
    v_mov_b32 v17, 0x3f80
    v_lshlrev_b32 v16, v16, v17
    v_lshrrev_b32 v17, 1, v12
    v_lshlrev_b32 v18, 1, v13
    v_cmp_eq_u32 vcc, v17, v18
    v_cndmask_b32 v{UB+2}, 0, v16, vcc
    v_add_u32 v18, 1, v18
    v_cmp_eq_u32 vcc, v17, v18
    v_cndmask_b32 v{UB+3}, 0, v16, vcc
    ''')
    for k in range(1, 4):
        a(f'v_mov_b32 v{UB+2+6*k}, v{UB+2}\nv_mov_b32 v{UB+3+6*k}, v{UB+3}')
    a('''
    s_waitcnt vmcnt(8) lgkmcnt(0)
    ''')
    a.stamp(1)
    a('s_barrier')
    a.stamp(2)
    a('s_waitcnt vmcnt(0)')
    a.stamp(3)
    a('c_loop:')
    body(a)
    a.stamp_if(4, 9, 256)
    a(f'''
    s_cmp_eq_u32 s9, 0
    s_cbranch_scc1 c_end
    s_lshl_b32 s9, s9, 5
    v_add_u32 v{VST}, s9, v{VST}
    s_mov_b32 s9, 0
    s_branch c_loop
    c_end:
    s_endpgm
    ''')
    return a
```

```python
from asmlib import *
from common import *
import os
HV = os.environ.get('HV', '')

H_GRID = 256
SCR = SLB
H_LDS = SLB + 16 * 1024
BUF = 32; SA = 64; SB = 96; ACC = 12; AC = 8
PF = 3
NBUF = 4
SPIN = 1 << 14
TMO = 31
GA = 28; GB = 26

def blk_reads(a, S, j):
    b = BUF + 8 * (j % NBUF)
    for t in range(4):
        a(f'v_mad_u32_u16 v{b+2*t}, v{S+2*j+(t>>1)}, 8, 0 op_sel:[{t&1},0,0,0]')
    for t in range(4):
        a(f'ds_read_b64 v[{b+2*t}:{b+2*t+1}], v{b+2*t}')

def blk_mfma(a, j):
    b = BUF + 8 * (j % NBUF)
    d = f'v[{ACC}:{ACC+3}]'
    a(f'v_smfmac_f32_16x16x64_bf16 {d}, v[{AC}:{AC+3}], v[{b}:{b+7}], v7')

def gather(a, tag, S, sm, vdis, vst, G, first):
    for r in range(4): a(f'v_mov_b32 v{ACC+r}, 0')
    order = [12, 11, 13, 10, 14, 9, 15, 8]
    for nb in order:
        a(f'''
        s_cmp_eq_u32 s{sm}, {4*nb}
        s_cbranch_scc1 {tag}_e{nb}
        ''')
    for nb in [16] + order:
        if nb != 16: a(f'{tag}_e{nb}:')
        for j in range(nb - 1, nb - 1 - PF, -1):
            blk_reads(a, S, j)
        a(f's_branch {tag}_p{nb-1-PF}')
    for j in range(15 - PF, -1, -1):
        a(f'{tag}_p{j}:')
        if 'o2' in HV:
            a(f's_waitcnt lgkmcnt({4*PF-4})')
            blk_mfma(a, j + PF)
            blk_reads(a, S, j)
        else:
            blk_reads(a, S, j)
            a(f's_waitcnt lgkmcnt({4*PF})')
            blk_mfma(a, j + PF)
    for j in range(PF - 1, -1, -1):
        a(f's_waitcnt lgkmcnt({4*j})')
        blk_mfma(a, j)
    a(f'''
    s_cmp_lg_u32 s{sm+2}, 0
    s_cbranch_scc1 {tag}_ovf
    {tag}_fin:
    v_mul_f32 v20, v{ACC}, v{vdis}
    v_mul_f32 v21, v{ACC+1}, v{vdis}
    v_mul_f32 v22, v{ACC+2}, v{vdis}
    v_mul_f32 v23, v{ACC+3}, v{vdis}
    v_cvt_pk_bf16_f32 v24, v20, v21
    v_cvt_pk_bf16_f32 v25, v22, v23
    v_mul_f32 v20, v20, v{vdis}
    v_mul_f32 v22, v22, v{vdis}
    v_mul_f32 v23, v23, v{vdis}
    v_add_u32 v20, s26, v20
    v_mul_f32 v21, v21, v{vdis}
    v_and_b32 v20, 0xfffe0000, v20
    v_cvt_pk_bf16_f32 v{G+1}, v22, v23
    v_cvt_pk_bf16_f32 v{G}, v20, v21
    v_or_b32 v{G}, s8, v{G}
    s_mov_b64 vcc, s[32:33]
    v_cndmask_b32_dpp v21, v25, v{G+1}, vcc quad_perm:[1,0,3,2] row_mask:0xf bank_mask:0xf
    v_cndmask_b32_dpp v20, v24, v{G}, vcc quad_perm:[1,0,3,2] row_mask:0xf bank_mask:0xf
    s_mov_b64 vcc, s[34:35]
    v_cndmask_b32_dpp v23, v{G+1}, v25, vcc quad_perm:[1,0,3,2] row_mask:0xf bank_mask:0xf
    v_cndmask_b32_dpp v22, v{G}, v24, vcc quad_perm:[1,0,3,2] row_mask:0xf bank_mask:0xf
    ''')
    a(f'''
    s_cmp_eq_u32 s24, 6
    s_cbranch_scc1 {tag}_hs
    s_mov_b64 exec, s[32:33]
    global_store_dwordx4 v{vst}, v[20:23], s[6:7]
    ''')
    if first:
        a(f'''
        s_cmp_ge_u32 s12, 9
        s_cbranch_scc1 h_poll
        ''')
    a(f'''
    {tag}_hs:
    s_mov_b64 exec, s[34:35]
    global_store_dwordx4 v{vst}, v[20:23], s[28:29] sc1
    s_mov_b64 exec, -1
    ''')

def overflow(a, tag, sm):
    a(f'''
    {tag}_ovf:
    s_lshl_b32 s36, s12, 10
    s_add_u32 s36, s36, {SCR}
    v_lshl_add_u32 v20, v1, 4, s36
    v_mov_b32 v24, 0
    v_mov_b32 v25, 0
    v_mov_b32 v26, 0
    v_mov_b32 v27, 0
    ds_write_b128 v20, v[24:27]
    s_lshl_b32 s37, s{sm+1}, 2
    s_add_u32 s37, s37, {OFF_OVF}
    v_lshl_add_u32 v21, v1, 2, s37
    s_mov_b32 s38, s{sm+2}                   ; remaining
    {tag}_ol:
    v_cmp_gt_u32 vcc, s38, v1
    s_and_b64 exec, vcc, vcc
    global_load_dword v22, v21, s[4:5]
    s_waitcnt vmcnt(0)
    v_lshrrev_b32 v23, 16, v22
    v_lshlrev_b32 v23, 3, v23
    ds_read_b64 v[24:25], v23
    v_bfe_u32 v22, v22, 6, 6
    v_lshl_add_u32 v22, v22, 4, s36
    s_waitcnt lgkmcnt(0)
    v_lshlrev_b32 v26, 16, v24
    v_and_b32 v27, 0xffff0000, v24
    v_lshlrev_b32 v30, 16, v25
    v_and_b32 v31, 0xffff0000, v25
    ds_add_f32 v22, v26
    ds_add_f32 v22, v27 offset:4
    ds_add_f32 v22, v30 offset:8
    ds_add_f32 v22, v31 offset:12
    s_mov_b64 exec, -1
    v_add_u32 v21, 256, v21
    s_waitcnt lgkmcnt(0)
    s_sub_u32 s38, s38, 64
    s_cbranch_scc1 {tag}_od
    s_cmp_lg_u32 s38, 0
    s_cbranch_scc1 {tag}_ol
    {tag}_od:
    ds_read_b128 v[24:27], v20
    s_waitcnt lgkmcnt(0)
    v_add_f32 v{ACC}, v{ACC}, v24
    v_add_f32 v{ACC+1}, v{ACC+1}, v25
    v_add_f32 v{ACC+2}, v{ACC+2}, v26
    v_add_f32 v{ACC+3}, v{ACC+3}, v27
    s_branch {tag}_fin
    ''')

def cnt(a, slot):
    if not Asm.STAMPS: return
    a(f's_cmp_eq_u32 s24, 2')
    a(f's_addc_u32 s{60+2*slot}, s{60+2*slot}, 0')

def gen_h():
    a = Asm(); a.name = 'h'
    a(f'''
    s_cmp_ge_u32 s2, {H_GRID}
    s_cbranch_scc1 h_end
    s_load_dwordx2 s[4:5], s[0:1], 88
    s_load_dwordx2 s[6:7], s[0:1], 24
    v_lshrrev_b32 v2, 6, v0
    v_and_b32 v1, 63, v0
    v_readfirstlane_b32 s12, v2              ; wave
    s_and_b32 s8, s2, 7
    s_lshl_b32 s8, s8, 2
    s_bfe_u32 s3, s2, 0x20003
    s_add_u32 s8, s8, s3                     ; slice
    s_lshr_b32 s9, s2, 5                     ; partition
    s_mul_i32 s10, s9, 49
    s_add_u32 s11, s10, 49
    s_lshr_b32 s10, s10, 1                   ; g0
    s_lshr_b32 s11, s11, 1                   ; g1
    s_add_u32 s13, s10, s12                  ; group A
    s_add_u32 s14, s13, 16                   ; group B
    s_cmp_lt_u32 s14, s11
    s_cselect_b32 s15, 1, 0
    s_cselect_b32 s27, -1, 0
    s_cselect_b32 s14, s14, s13
    s_mov_b32 s26, -1
    s_mul_i32 s25, s8, {SLB}
    s_lshr_b32 s3, s12, 1
    s_and_b32 s36, s12, 1
    s_add_u32 s37, s3, s36
    s_mul_i32 s37, s37, 49
    s_lshr_b32 s37, s37, 1
    s_lshl_b32 s37, s37, 9
    s_mul_i32 s36, s36, 6144
    s_sub_u32 s37, s37, s36
    v_lshl_add_u32 v3, v1, 4, s37
    s_add_u32 s37, s25, {OFF_G + 3072}
    v_add_u32 v2, s37, v3
    s_lshl_b32 s36, s13, 4
    s_lshl_b32 s37, s14, 4
    s_add_u32 s36, s36, {OFF_META}
    s_add_u32 s37, s37, {OFF_META}
    s_mov_b32 s24, 0
    s_and_b32 s39, s12, 3
    v_lshl_add_u32 v20, s13, 6, v1           ; node A
    v_lshl_add_u32 v21, s14, 6, v1           ; node B
    v_min_u32 v22, {N-1}, v20
    v_min_u32 v23, {N-1}, v21
    v_lshlrev_b32 v22, 1, v22
    v_lshlrev_b32 v23, 1, v23
    s_lshl_b32 s40, s13, 13
    s_lshl_b32 s41, s14, 13
    s_add_u32 s40, s40, {OFF_SCHED + 4096}
    s_add_u32 s41, s41, {OFF_SCHED + 4096}
    v_lshl_add_u32 v24, v1, 4, s40
    v_lshl_add_u32 v25, v1, 4, s41
    s_waitcnt lgkmcnt(0)
    s_load_dwordx4 s[16:19], s[4:5], s36
    s_load_dwordx4 s[20:23], s[4:5], s37
    s_add_u32 s28, s4, {HSZ}
    s_addc_u32 s29, s5, 0
    ''')
    for i in range(6):
        a(f'global_load_dwordx4 v[{BUF+4*i}:{BUF+3+4*i}], v2, s[4:5] offset:{i*1024-3072}')
    a(f'''
    s_cmp_lg_u32 s39, 2
    s_cbranch_scc1 hf_n7
    s_mov_b32 exec_hi, 0
    global_load_dwordx4 v[{BUF+24}:{BUF+27}], v2, s[4:5] offset:3072
    s_mov_b32 exec_hi, -1
    hf_n7:
    global_load_ushort v16, v22, s[6:7]
    global_load_ushort v17, v23, s[6:7]
    ''')
    for q in range(8):
        a(f'global_load_dwordx4 v[{SA+4*q}:{SA+3+4*q}], v24, s[4:5] offset:{q*1024-4096}')
    a('''
    s_cmp_eq_u32 s15, 0
    s_cbranch_scc1 hf_nb
    ''')
    for q in range(8):
        a(f'global_load_dwordx4 v[{SB+4*q}:{SB+3+4*q}], v25, s[4:5] offset:{q*1024-4096}')
    a(f'''
    s_waitcnt vmcnt(16)
    s_branch hf_go
    hf_nb:
    s_waitcnt vmcnt(8)
    hf_go:
    ''')
    for i in range(6):
        a(f'ds_write_b128 v3, v[{BUF+4*i}:{BUF+3+4*i}] offset:{i*1024}')
    a(f'''
    s_cmp_lg_u32 s39, 2
    s_cbranch_scc1 h_w7
    s_mov_b32 exec_hi, 0
    ds_write_b128 v3, v[{BUF+24}:{BUF+27}] offset:6144
    s_mov_b32 exec_hi, -1
    h_w7:
    v_bfe_u32 v26, v1, 4, 1                  ; ab&1
    v_bfe_u32 v27, v1, 3, 1                  ; b>>1
    v_cmp_eq_u32 vcc, v26, v27
    v_mov_b32 v29, 0x3f80
    v_cndmask_b32 v29, 0, v29, vcc
    v_and_b32 v28, 4, v1                     ; b&1
    v_cmp_eq_u32 vcc, 0, v28
    v_cndmask_b32 v{AC}, 0, v29, vcc
    v_cndmask_b32 v{AC+1}, 0, v29, vcc
    v_cndmask_b32 v{AC+2}, v29, 0, vcc
    v_cndmask_b32 v{AC+3}, v29, 0, vcc
    v_and_b32 v26, 3, v1                     ; r
    v_add_u32 v27, 1, v26
    v_and_b32 v27, 3, v27
    v_lshl_or_b32 v26, v27, 2, v26
    v_mul_u32_u24 v7, 0x1111, v26
    s_mov_b32 s32, 0x55555555
    s_mov_b32 s33, 0x55555555
    s_not_b64 s[34:35], s[32:33]
    v_mov_b32 v26, {OFF_H}
    v_mov_b32 v27, {OFF_G}
    v_cndmask_b32 v26, v26, v27, s[32:33]
    v_add_u32 v26, s25, v26
    v_and_b32 v27, -2, v20
    v_lshl_add_u32 v18, v27, 3, v26
    v_and_b32 v27, -2, v21
    v_lshl_add_u32 v19, v27, 3, v26
    v_lshlrev_b32 v16, 16, v16
    v_lshlrev_b32 v17, 16, v17
    v_cmp_gt_u32 vcc, {N}, v20
    v_cndmask_b32 v16, 0, v16, vcc
    v_cmp_gt_u32 vcc, {N}, v21
    v_cndmask_b32 v17, 0, v17, vcc
    v_lshlrev_b32 v4, 3, v20
    v_and_b32 v26, 31, v1
    v_lshrrev_b32 v27, 5, v1
    v_lshlrev_b32 v27, 13, v27
    v_lshl_add_u32 v26, v26, 4, v27
    s_lshl_b32 s36, s13, 9
    s_add_u32 s36, s36, s25
    s_add_u32 s36, s36, {OFF_G}
    v_add_u32 v5, s36, v26
    s_mov_b32 s30, {SPIN}
    s_add_u32 s3, s9, s12
    s_and_b32 s3, s3, 7
    s_and_b32 s31, s3, 1
    s_sub_u32 s31, 0, s31
    s_mul_i32 s36, s3, 49
    s_lshr_b32 s36, s36, 1
    s_lshl_b32 s36, s36, 9
    s_add_u32 s37, s25, {OFF_G + 4096}
    s_cmp_lt_u32 s12, 9
    s_cbranch_scc1 h_np
    v_lshl_add_u32 v3, v1, 4, s36
    v_add_u32 v2, s37, v3
    v_add_u32 v19, 8192, v2
    v_and_b32 v17, 7, v1
    s_lshl_b32 s36, s8, 10
    s_add_u32 s36, s36, {OFF_FLAG}
    v_lshl_add_u32 v17, v17, 7, s36
    h_np:
    s_mov_b64 s[6:7], s[28:29]
    s_mov_b64 s[10:11], s[4:5]
    s_mov_b64 exec, s[26:27]
    global_load_dword v31, v5, s[6:7]
    s_mov_b64 exec, -1
    s_waitcnt vmcnt(1)
    h_top:
    s_add_u32 s8, s24, 2
    s_bfe_u32 s8, s8, 0x10001
    s_lshl_b32 s27, s8, 16
    s_xor_b32 s26, s27, 0x10000
    s_setprio 3
    s_cmp_ge_u32 s12, 8
    s_cbranch_scc1 h_pr
    s_setprio 2
    h_pr:
    s_waitcnt lgkmcnt(0)
    ''')
    a.stamp_if(2, 24, 3)
    a.stamp_if(13, 24, 0)
    a('s_barrier')
    a.stamp_if(1, 24, 0)
    a.stamp_if(5, 24, 2)
    a.stamp_if(3, 24, 3)
    a('''
    s_cmp_eq_u32 s24, 6
    s_cbranch_scc1 h_tok
    h_tokd:
    ''')
    gather(a, 'ga', SA, 16, 16, 18, GA, True)
    a.stamp_if(6, 24, 2)
    a('''
    s_cmp_eq_u32 s15, 0
    s_cbranch_scc1 h_nob
    s_setprio 0
    ''')
    gather(a, 'gb', SB, 20, 17, 19, GB, False)
    a.stamp_if(7, 24, 2)
    a(f'''
    s_cmp_eq_u32 s24, 6
    s_cbranch_scc1 h_end
    s_barrier
    ds_write_b64 v4, v[{GA}:{GA+1}]
    ds_write_b64 v4, v[{GB}:{GB+1}] offset:8192
    s_branch h_next
    h_nob:
    s_cmp_eq_u32 s24, 6
    s_cbranch_scc1 h_last
    s_barrier
    ds_write_b64 v4, v[{GA}:{GA+1}]
    s_branch h_next
    h_poll:
    s_mov_b64 exec, -1
    ''')
    Q = [40 + 2 * j for j in range(5)]
    NW = [50, 52, 54, 56, 20]
    def P(r): return f's[{r}:{r+1}]'
    for j in range(4): a(f's_mov_b64 {P(Q[j])}, -1')
    a(f'''
    s_mov_b32 s{Q[4]}, s31
    s_mov_b32 s{Q[4]+1}, 0
    s_mov_b32 s58, {TMO}
    ''')
    a.stamp_if(8, 24, 2)
    for e, p0 in enumerate((4, 0)):
        a(f'h_pe{e}:')
        cnt(a, 14)
        for i in range(p0, p0 + 4):
            a(f'global_load_dwordx4 v[{BUF+4*i}:{BUF+3+4*i}], v2, s[6:7] offset:{i*1024-4096} sc1')
        b = BUF + 4 * p0
        a(f'''
        s_waitcnt vmcnt(3)
        v_bitop3_b32 v6, v{b}, v{b+2}, s8 bitop3:0x7e
        s_waitcnt vmcnt(2)
        v_bitop3_b32 v30, v{b+4}, v{b+6}, s8 bitop3:0x7e
        s_waitcnt vmcnt(1)
        v_bitop3_b32 v31, v{b+8}, v{b+10}, s8 bitop3:0x7e
        v_or3_b32 v6, v6, v30, v31
        s_waitcnt vmcnt(0)
        v_bitop3_b32 v30, v{b+12}, v{b+14}, s8 bitop3:0x7e
        v_bitop3_b32 v6, v6, v30, 1 bitop3:0xa8
        v_cmp_ne_u32 vcc, 0, v6
        s_and_b64 exec, vcc, vcc
        s_cbranch_scc0 h_ped{e}
        s_sub_u32 s58, s58, 1
        s_cbranch_scc0 h_pe{e}
        buffer_wbl2 sc1
        s_mov_b32 s58, {TMO}
        s_sub_u32 s30, s30, 1
        s_cbranch_scc0 h_pe{e}
        s_mov_b32 s30, 0
        h_ped{e}:
        s_mov_b64 exec, -1
        ''')
        if e == 0: a.stamp_if(4, 24, 2)
    a.stamp_if(9, 24, 2)
    def lload(j, sc='sc1'): a(f'global_load_dwordx4 v[{SB+4*j}:{SB+3+4*j}], v19, s[6:7] offset:{j*1024-4096} {sc}')
    sc = 'sc1'
    for j in range(4): lload(j, sc)
    a(f'''
    s_and_b64 exec, {P(Q[4])}, {P(Q[4])}
    s_cbranch_scc0 h_pl0
    ''')
    lload(4, sc)
    a(f'''
    h_pl0:
    s_mov_b64 exec, -1
    s_barrier
    ''')
    a.stamp_if(10, 24, 2)
    for i in range(8):
        a(f'ds_write_b128 v3, v[{BUF+4*i}:{BUF+3+4*i}] offset:{i*1024}')
    a(f'ds_write_b64 v4, v[{GA}:{GA+1}]')
    a.stamp_if(11, 24, 2)
    a('h_ly:')
    cnt(a, 15)
    a('s_waitcnt vmcnt(0)')
    for j in range(5):
        a(f'''
        s_mov_b64 exec, {P(Q[j])}
        v_bitop3_b32 v6, v{SB+4*j}, v{SB+4*j+2}, s8 bitop3:0x7e
        v_and_b32 v6, 1, v6
        v_cmp_ne_u32 {P(Q[j])}, 0, v6
        s_andn2_b64 {P(NW[j])}, exec, {P(Q[j])}
        s_and_b64 exec, {P(Q[j])}, {P(Q[j])}
        s_cbranch_scc0 h_ls{j}
        ''')
        lload(j)
        a(f'h_ls{j}:')
    for j in range(5):
        a(f'''
        s_mov_b64 exec, {P(NW[j])}
        ds_write_b128 v3, v[{SB+4*j}:{SB+3+4*j}] offset:{8192+j*1024}
        ''')
    a(f'''
    s_or_b64 s[36:37], {P(Q[0])}, {P(Q[1])}
    s_or_b64 s[38:39], {P(Q[2])}, {P(Q[3])}
    s_or_b64 s[36:37], s[36:37], {P(Q[4])}
    s_or_b64 s[36:37], s[36:37], s[38:39]
    s_cbranch_scc0 h_lyd
    s_sub_u32 s58, s58, 1
    s_cbranch_scc0 h_ly
    buffer_wbl2 sc1
    s_mov_b32 s58, {TMO}
    s_sub_u32 s30, s30, 1
    s_cbranch_scc0 h_ly
    s_mov_b32 s30, 0
    h_lyd:
    s_mov_b64 exec, s[34:35]
    global_store_dwordx4 v18, v[20:23], s[28:29] sc1
    s_mov_b64 exec, -1
    ''')
    a.stamp_if(12, 24, 2)
    a(f'''
    h_next:
    s_add_u32 s24, s24, 1
    s_add_u32 s28, s28, {HSZ}
    s_addc_u32 s29, s29, 0
    s_mov_b64 s[36:37], s[6:7]
    s_mov_b64 s[6:7], s[10:11]
    s_mov_b64 s[10:11], s[36:37]
    s_branch h_top
    h_tok:
    s_cmp_lg_u32 s12, 15
    s_cbranch_scc1 h_tokd
    v_mov_b32 v6, 1
    s_lshl_b64 exec, 1, s9
    global_store_dword v17, v6, s[4:5] sc1
    s_mov_b64 exec, -1
    s_branch h_tokd
    h_last:
    s_cmp_lg_u32 s12, 15
    s_cbranch_scc1 h_end
    s_mov_b32 s58, {TMO}
    s_mov_b64 exec, 0xff
    h_tp:
    global_load_dword v6, v17, s[4:5] sc1
    s_waitcnt vmcnt(0)
    v_cmp_eq_u32 vcc, 0, v6
    s_and_b64 exec, vcc, vcc
    s_cbranch_scc0 h_end
    s_sub_u32 s58, s58, 1
    s_cbranch_scc0 h_tp
    buffer_wbl2 sc1
    s_mov_b32 s58, {TMO}
    s_sub_u32 s30, s30, 1
    s_cbranch_scc0 h_tp
    s_branch h_end
    ''')
    overflow(a, 'ga', 16)
    overflow(a, 'gb', 20)
    a('h_end:')
    a('s_endpgm')
    return a
```

```python
from asmlib import *
from common import *

K1_W = 3
K1_SORT0 = K1_W
K1_TR0 = K1_SORT0 + NCH
K1_GRID = K1_TR0 + NG
K1_LDS = 2 * 128 * 272 + 1024
RS = 272
WB = 128 * RS
RM = 2 * WB

def xg_reduce(a, v, t):
    a(f'''
    v_mov_b32 v{t}, v{v}
    v_permlane16_swap_b32 v{v}, v{t}
    v_add_f32 v{v}, v{v}, v{t}
    v_mov_b32 v{t}, v{v}
    v_permlane32_swap_b32 v{v}, v{t}
    v_add_f32 v{v}, v{v}, v{t}
    ''')

def gen_k1():
    a = Asm(); a.name = 'k1'
    a(f'''
    s_cmp_ge_u32 s2, {K1_GRID}
    s_cbranch_scc1 k1_end
    s_load_dwordx16 s[8:23], s[0:1], 0
    s_load_dwordx2 s[24:25], s[0:1], 64
    s_load_dwordx2 s[26:27], s[0:1], 88
    s_cmp_ge_u32 s2, {K1_TR0}
    s_cbranch_scc1 k1_tr
    s_cmp_lt_u32 s2, {K1_SORT0}
    s_cbranch_scc1 k1_w
    ''')
    HIST = 0; START = 1024; SORTED = 2048
    a(f'''
    s_sub_u32 s3, s2, {K1_SORT0}
    s_mul_i32 s4, s3, {CH*4}
    v_lshlrev_b32 v1, 4, v0
    v_add_u32 v2, s4, v1
    v_lshlrev_b32 v3, 2, v0
    v_mov_b32 v4, 0
    v_mov_b32 v5, 1
    v_cmp_gt_u32 vcc, {CH//4}, v0
    s_mov_b64 s[28:29], vcc
    v_cmp_gt_u32 vcc, 256, v0
    s_and_saveexec_b64 s[30:31], vcc
    s_cbranch_execz k1s_a
    ds_write_b32 v3, v4 offset:{HIST}
    k1s_a:
    s_mov_b64 exec, s[28:29]
    s_waitcnt lgkmcnt(0)
    s_cbranch_execz k1s_b
    global_load_dwordx4 v[8:11], v2, s[10:11]
    global_load_dwordx4 v[12:15], v2, s[12:13]
    k1s_b:
    s_barrier
    s_cbranch_execz k1s_c
    s_waitcnt vmcnt(0)
    ''')
    a.stamp(1)
    for e in range(4):
        a(f'''
        v_lshrrev_b32 v{16+e}, 4, v{12+e}
        v_and_b32 v{16+e}, 0x3fc, v{16+e}
        ds_add_rtn_u32 v{20+e}, v{16+e}, v5 offset:{HIST}
        v_sub_u32 v24, v{8+e}, v{12+e}
        v_and_b32 v24, 31, v24
        v_and_b32 v25, 63, v{12+e}
        v_lshl_or_b32 v24, v25, 6, v24
        v_and_b32 v25, 32, v{12+e}
        v_lshl_or_b32 v24, v25, 10, v24
        v_lshl_or_b32 v{8+e}, v{8+e}, 16, v24
        ''')
    a(f'''
    s_waitcnt lgkmcnt(0)
    k1s_c:
    s_mov_b64 exec, -1
    s_barrier
    v_and_b32 v6, 63, v0
    v_lshlrev_b32 v6, 4, v6
    ds_read_b128 v[24:27], v6 offset:{HIST}
    s_waitcnt lgkmcnt(0)
    v_add_u32 v29, v24, v25
    v_add_u32 v30, v29, v26
    v_add_u32 v31, v30, v27
    v_mov_b32 v32, v31
    v_add_u32_dpp v32, v32, v32 row_shr:1 row_mask:0xf bank_mask:0xf bound_ctrl:0
    v_add_u32_dpp v32, v32, v32 row_shr:2 row_mask:0xf bank_mask:0xf bound_ctrl:0
    v_add_u32_dpp v32, v32, v32 row_shr:4 row_mask:0xf bank_mask:0xf bound_ctrl:0
    v_add_u32_dpp v32, v32, v32 row_shr:8 row_mask:0xf bank_mask:0xf bound_ctrl:0
    v_add_u32_dpp v32, v32, v32 row_bcast:15 row_mask:0xa bank_mask:0xf
    v_add_u32_dpp v32, v32, v32 row_bcast:31 row_mask:0xc bank_mask:0xf
    v_sub_u32 v36, v32, v31
    v_add_u32 v37, v36, v24
    v_add_u32 v38, v36, v29
    v_add_u32 v39, v36, v30
    ds_write_b128 v6, v[36:39] offset:{START}
    v_lshl_or_b32 v40, v37, 16, v36
    v_lshl_or_b32 v41, v38, 16, v37
    v_lshl_or_b32 v42, v39, 16, v38
    v_lshl_or_b32 v43, v32, 16, v39
    v_cmp_gt_u32 vcc, 64, v0
    s_and_saveexec_b64 s[30:31], vcc
    s_cbranch_execz k1s_d
    s_lshl_b32 s5, s3, 10
    s_add_u32 s5, s5, {OFF_OFFS}
    v_add_u32 v7, s5, v6
    global_store_dwordx4 v7, v[40:43], s[26:27]
    k1s_d:
    s_mov_b64 exec, s[28:29]
    s_waitcnt lgkmcnt(0)
    s_cbranch_execz k1s_e
    ''')
    for e in range(4):
        a(f'ds_read_b32 v{24+e}, v{16+e} offset:{START}')
    for e in range(4):
        a(f'''
        s_waitcnt lgkmcnt({3-e})
        v_add_lshl_u32 v{24+e}, v{24+e}, v{20+e}, 2
        ''')
    for e in range(4):
        a(f'ds_write_b32 v{24+e}, v{8+e} offset:{SORTED}')
    a(f'''
    s_waitcnt lgkmcnt(0)
    k1s_e:
    s_barrier
    s_cbranch_execz k1_end
    ds_read_b128 v[8:11], v1 offset:{SORTED}
    v_add_u32 v2, {OFF_EDG}, v2
    s_waitcnt lgkmcnt(0)
    global_store_dwordx4 v2, v[8:11], s[26:27]
    s_endpgm
    ''')
    a(f'''
    k1_tr:
    s_sub_u32 s3, s2, {K1_TR0}
    v_and_b32 v1, 63, v0
    v_lshrrev_b32 v2, 6, v0
    v_lshl_add_u32 v3, s3, 6, v1          ; node
    v_lshlrev_b32 v4, 8, v3
    v_lshl_add_u32 v4, v2, 5, v4
    v_lshlrev_b32 v5, 1, v3
    v_lshrrev_b32 v6, 2, v2
    v_and_b32 v7, 3, v2
    v_lshl_add_u32 v6, v6, 4, v7          ; slice 16(w>>2)+(w&3)
    v_mul_u32_u24 v6, {SLB}, v6
    v_lshl_add_u32 v6, v3, 3, v6
    s_mov_b32 s4, 0x05040100
    s_mov_b32 s5, 0x07060302
    ''')
    for r in range(8, 17): a(f'v_mov_b32 v{r}, 0')
    a(f'''
    v_cmp_gt_u32 vcc, {N}, v3
    s_and_saveexec_b64 s[30:31], vcc
    s_waitcnt lgkmcnt(0)
    s_cbranch_execz k1t_a
    global_load_dwordx4 v[8:11], v4, s[8:9]
    global_load_dwordx4 v[12:15], v4, s[8:9] offset:16
    global_load_short_d16_hi v16, v5, s[14:15]
    k1t_a:
    s_mov_b64 exec, -1
    v_add_u32 v7, {4*SLB}, v6
    v_add_u32 v17, {8*SLB}, v6
    v_add_u32 v18, {12*SLB}, v6
    s_add_u32 s28, s26, {OFF_G}
    s_addc_u32 s29, s27, 0
    s_waitcnt vmcnt(0)
    ''')
    a.stamp(2)
    for cc in range(4):
        i = cc >> 1; sel = 's5' if cc & 1 else 's4'
        a(f'v_perm_b32 v{32+2*cc}, v{8+i+2}, v{8+i}, {sel}')
        a(f'v_perm_b32 v{33+2*cc}, v{8+i+6}, v{8+i+4}, {sel}')
    a(f'''
    global_store_dwordx2 v6, v[32:33], s[26:27]
    global_store_dwordx2 v7, v[34:35], s[26:27]
    global_store_dwordx2 v17, v[36:37], s[26:27]
    global_store_dwordx2 v18, v[38:39], s[26:27]
    ''')
    for r in range(8):
        a(f'''
        v_lshlrev_b32 v20, 16, v{32+r}
        v_and_b32 v21, 0xffff0000, v{32+r}
        v_mul_f32 v20, v20, v16
        v_mul_f32 v21, v21, v16
        {'v_add_u32 v20, 0x10000, v20' if r % 2 == 0 else ''}
        {'v_and_b32 v20, 0xfffe0000, v20' if r % 2 == 0 else ''}
        v_cvt_pk_bf16_f32 v{24+r}, v20, v21
        ''')
    a(f'''
    global_store_dwordx2 v6, v[24:25], s[28:29]
    global_store_dwordx2 v7, v[26:27], s[28:29]
    global_store_dwordx2 v17, v[28:29], s[28:29]
    global_store_dwordx2 v18, v[30:31], s[28:29]
    s_endpgm
    ''')
    a(f'''
    k1_w:
    v_lshlrev_b32 v1, 4, v0
    v_bfe_u32 v2, v0, 4, 2                 ; row&3
    v_lshrrev_b32 v3, 6, v0                ; row>>2
    v_lshl_add_u32 v2, v2, 4, v3           ; position
    v_and_b32 v3, 15, v0
    v_mul_u32_u24 v2, {RS}, v2
    v_lshl_add_u32 v2, v3, 4, v2
    v_add_u32 v4, 0x2000, v1
    v_add_u32 v5, 0x4000, v1
    v_add_u32 v6, 0x6000, v1
    s_waitcnt lgkmcnt(0)
    s_cmp_eq_u32 s2, 0
    s_cselect_b64 s[28:29], s[16:17], s[20:21]
    s_cselect_b64 s[30:31], s[18:19], s[22:23]
    global_load_dwordx4 v[8:11], v1, s[28:29]
    global_load_dwordx4 v[12:15], v4, s[28:29]
    global_load_dwordx4 v[16:19], v5, s[28:29]
    global_load_dwordx4 v[20:23], v6, s[28:29]
    global_load_dwordx4 v[24:27], v1, s[30:31]
    global_load_dwordx4 v[28:31], v4, s[30:31]
    global_load_dwordx4 v[32:35], v5, s[30:31]
    global_load_dwordx4 v[36:39], v6, s[30:31]
    ''')
    for u in range(8):
        a(f'''
        s_waitcnt vmcnt({7-u})
        ds_write_b128 v2, v[{8+4*u}:{11+4*u}] offset:{(u>>2)*WB + (64*((u&3)>>1) + 8*(u&1))*RS}
        ''')
    a(f'''
    v_lshrrev_b32 v7, 6, v0
    v_and_b32 v1, 63, v0                   ; lane
    v_readfirstlane_b32 s3, v7
    v_bfe_u32 v4, v0, 4, 2                 ; g
    v_mul_u32_u24 v5, {RS}, v3             ; (l&15)*RS
    v_lshl_add_u32 v6, v4, 4, v5
    v_lshl_add_u32 v7, v4, 3, v5
    s_waitcnt lgkmcnt(0)
    s_barrier
    ''')
    a.stamp(3)
    a(f'''
    s_cmp_eq_u32 s2, 2
    s_cbranch_scc1 k1_wx
    s_cmp_eq_u32 s2, 1
    s_cbranch_scc1 k1_wv
    ''')
    ACC = 64
    a(f'''
    s_mul_i32 s4, s3, {16*RS}
    v_add_u32 v2, s4, v6
    ''')
    for kk in range(4):
        a(f'ds_read_b128 v[{8+4*kk}:{11+4*kk}], v2 offset:{WB + kk*64}')
        a(f'ds_read_b128 v[{24+4*kk}:{27+4*kk}], v2 offset:{kk*64}')
    for et in range(8):
        base = 40 if et % 2 == 0 else 100
        for kk in range(4):
            a(f'ds_read_b128 v[{base+4*kk}:{base+3+4*kk}], v6 offset:{WB + et*16*RS + kk*64}')
        a('s_waitcnt lgkmcnt(0)')
        for kk in range(4):
            c = '0' if (et == 0 and kk == 0) else 'v[96:99]'
            a(f'v_mfma_f32_16x16x32_bf16 v[96:99], v[{base+4*kk}:{base+3+4*kk}], v[{24+4*kk}:{27+4*kk}], {c}')
    a(f'''
    v_add_f32 v96, v96, v97
    v_add_f32 v98, v98, v99
    v_add_f32 v96, v96, v98
    ''')
    xg_reduce(a, 96, 97)
    a(f'''
    v_lshlrev_b32 v97, 2, v3
    s_lshl_b32 s4, s3, 6
    s_add_u32 s4, s4, {RM}
    v_add_u32 v97, s4, v97
    ds_write_b32 v97, v96
    s_branch k1_wmain
    ''')
    a(f'''
    k1_wv:
    s_lshr_b32 s4, s3, 2
    s_lshl_b32 s4, s4, 7
    s_and_b32 s5, s3, 3
    s_lshl_b32 s5, s5, 1
    s_add_u32 s4, s4, s5                   ; (64*(c>>2) + (c&3))*2 bytes
    v_mul_u32_u24 v2, {2*RS}, v4
    v_lshl_add_u32 v2, v3, 3, v2
    v_add_u32 v2, s4, v2
    v_add_u32 v2, {WB}, v2
    ''')
    for kk in range(4):
        for j in range(8):
            r = (40 if j % 2 == 0 else 100) + 4*kk + j//2
            a(f'ds_read_u16 v{r}, v2 offset:{(64*(kk>>1) + 16*(j&3) + 8*(kk&1) + (j>>2))*RS}')
    a('s_waitcnt lgkmcnt(0)')
    for i in range(16):
        a(f'v_lshl_or_b32 v{8+i}, v{100+i}, 16, v{40+i}')
    a('k1_wmain:')
    for rt in range(8):
        base = 40 if rt % 2 == 0 else 100
        for kk in range(4):
            a(f'ds_read_b128 v[{base+4*kk}:{base+3+4*kk}], v6 offset:{rt*16*RS + kk*64}')
        a('s_waitcnt lgkmcnt(0)')
        for kk in range(4):
            d = f'v[{ACC+4*rt}:{ACC+3+4*rt}]'
            c = '0' if kk == 0 else d
            a(f'v_mfma_f32_16x16x32_bf16 {d}, v[{base+4*kk}:{base+3+4*kk}], v[{8+4*kk}:{11+4*kk}], {c}')
    a(f'''
    s_lshl_b32 s4, s3, 12
    s_lshl_b32 s5, s2, 15
    s_add_u32 s4, s4, s5
    s_add_u32 s4, s4, {OFF_W}
    v_lshl_add_u32 v2, v1, 4, s4
    v_mov_b32 v9, 1.0
    s_cmp_eq_u32 s2, 1
    s_cbranch_scc1 k1_wfin
    s_barrier
    v_lshlrev_b32 v8, 4, v4
    v_add_u32 v8, {RM}, v8
    ''')
    for rt in range(8):
        a(f'ds_read_b128 v[{12+4*rt}:{15+4*rt}], v8 offset:{rt*64}')
    a(f'''
    v_mov_b32 v9, {f32hex(SCALE_LOG2E)}
    v_mov_b32 v10, {f32hex(-1.0/128)}
    s_waitcnt lgkmcnt(0)
    ''')
    for i in range(32):
        a(f'v_fmac_f32 v{ACC+i}, v{12+i}, v10')
    a('k1_wfin:')
    def finish(a):
        a(f'v_add_f32 v10, v{ACC}, v{ACC+1}')
        for i in range(2, 32): a(f'v_add_f32 v10, v10, v{ACC+i}')
        xg_reduce(a, 10, 11)
        a(f'v_mul_f32 v10, {f32hex(-1.0/128)}, v10')
        for i in range(32):
            a(f'v_add_f32 v{ACC+i}, v{ACC+i}, v10')
            a(f'v_mul_f32 v{ACC+i}, v{ACC+i}, v9')
        for m in range(4):
            for q in range(4):
                a(f'v_cvt_pk_bf16_f32 v{12+4*m+q}, v{ACC+8*m+2*q}, v{ACC+8*m+2*q+1}')
            a(f'global_store_dwordx4 v2, v[{12+4*m}:{15+4*m}], s[26:27] offset:{m*1024}')
    finish(a)
    a('s_endpgm')
    a(f'''
    k1_wx:
    s_cmp_lt_u32 s3, 4
    s_cbranch_scc1 k1_wx0
    v_and_b32 v8, 255, v0
    v_lshlrev_b32 v8, 7, v8
    v_add_u32 v8, {OFF_FLAG}, v8
    v_mov_b32 v9, 0
    global_store_dword v8, v9, s[26:27]
    s_endpgm
    k1_wx0:
    s_cmp_lg_u32 s3, 0
    s_cbranch_scc1 k1_end
    v_lshlrev_b32 v2, 5, v4
    ''')
    for m in range(4):
        a(f'global_load_dwordx4 v[{8+4*m}:{11+4*m}], v2, s[24:25] offset:{(m>>1)*128 + (m&1)*16}')
    a(f'''
    s_mov_b32 s4, 0x05040100
    s_mov_b32 s5, 0x07060302
    v_mov_b32 v25, 0x3c003c00
    v_and_b32 v24, 7, v0
    v_cmp_eq_u32 s[28:29], 2, v24
    v_cmp_gt_u32 vcc, 2, v24
    v_cmp_eq_u32 s[30:31], 4, v24
    s_or_b64 vcc, vcc, s[30:31]
    v_cndmask_b32 v29, 0, v25, vcc
    v_cmp_lt_u32 vcc, 3, v24               ; e'&4
    v_and_b32 v24, 3, v0
    v_cmp_eq_u32 s[30:31], 3, v24
    v_mov_b32 v26, 0
    v_lshrrev_b32 v30, 2, v3
    v_lshl_add_u32 v30, v24, 4, v30
    v_mul_u32_u24 v30, {RS}, v30
    v_lshl_add_u32 v30, v4, 5, v30
    s_waitcnt vmcnt(0)
    ''')
    for m in range(4):
        D = 8 + 8 * (m >> 1); b = m & 1
        for q in range(4):
            sel = 's5' if q >= 2 else 's4'
            i = D + b + 4 * (q & 1)
            a(f'v_perm_b32 v{ACC+4*m+q}, v{i+2}, v{i}, {sel}')
            a(f'v_cndmask_b32 v{ACC+4*m+q}, v29, v{ACC+4*m+q}, s[28:29]')
    for i in range(16):
        a(f'''
        v_lshlrev_b32 v27, 16, v{8+i}
        v_and_b32 v28, 0xffff0000, v{8+i}
        v_add_f32 v26, v26, v27
        v_add_f32 v26, v26, v28
        v_cndmask_b32 v{8+i}, v25, v{8+i}, vcc
        ''')
    xg_reduce(a, 26, 27)
    a(f'''
    v_lshlrev_b32 v2, 4, v1
    v_add_u32 v2, {OFF_W+W_X1}, v2
    v_mov_b32 v28, {OFF_W+W_S}
    global_store_dword v28, v26, s[26:27]
    s_not_b64 exec, s[30:31]
    ''')
    for m in range(4):
        a(f'global_store_dwordx4 v2, v[{ACC+4*m}:{ACC+3+4*m}], s[26:27] offset:{m*1024}')
    a('s_mov_b64 exec, -1')
    a('s_waitcnt vmcnt(0)')
    for ft in range(8):
        base = 40 if ft % 2 == 0 else 100
        for m in range(4):
            a(f'ds_read_b128 v[{base+4*m}:{base+3+4*m}], v30 offset:{WB + (64*(ft>>2) + 4*(ft&3))*RS + (m>>1)*128 + (m&1)*16}')
        a('s_waitcnt lgkmcnt(0)')
        for m in range(4):
            d = f'v[{ACC+4*ft}:{ACC+3+4*ft}]'
            c = '0' if m == 0 else d
            a(f'v_mfma_f32_16x16x32_bf16 {d}, v[{base+4*m}:{base+3+4*m}], v[{8+4*m}:{11+4*m}], {c}')
    a('s_waitcnt vmcnt(0)')
    for i in range(16):
        x, y = ACC + 2*i, ACC + 2*i + 1
        a(f'''
        v_cvt_pk_bf16_f32 v{8+i}, v{x}, v{y}
        v_lshlrev_b32 v56, 16, v{8+i}
        v_and_b32 v57, 0xffff0000, v{8+i}
        v_sub_f32 v56, v{x}, v56
        v_sub_f32 v57, v{y}, v57
        v_cvt_pk_bf16_f32 v{24+i}, v56, v57
        ''')
    for rt in range(8):
        base = 40 if rt % 2 == 0 else 100
        for m in range(4):
            a(f'ds_read_b64 v[{base+4*m}:{base+1+4*m}], v7 offset:{rt*16*RS + m*64}')
            a(f'ds_read_b64 v[{base+2+4*m}:{base+3+4*m}], v7 offset:{rt*16*RS + m*64 + 32}')
        a('s_waitcnt lgkmcnt(0)')
        for m in range(4):
            d = f'v[{ACC+4*rt}:{ACC+3+4*rt}]'
            c = '0' if m == 0 else d
            a(f'v_mfma_f32_16x16x32_bf16 {d}, v[{base+4*m}:{base+3+4*m}], v[{8+4*m}:{11+4*m}], {c}')
            a(f'v_mfma_f32_16x16x32_bf16 {d}, v[{base+4*m}:{base+3+4*m}], v[{24+4*m}:{27+4*m}], {d}')
    a('v_mov_b32 v9, 1.0')
    a('s_mov_b64 exec, s[30:31]')
    a('s_branch k1_wfin')
    a('k1_end:')
    a('s_endpgm')
    return a
```

```python
from asmlib import *
from common import *

SCH = 0; XL = 8192; LB = 16384; XC = 16896; RB = 17408; OC = 17920; WSUM = 17984; PAD = 18048
K2_LDS = 18304
PAT = 4; EPAT = 2; RSTEP = 21; SLACK = 0

def wave_red(a, op, v):
    for c in ('row_shr:1', 'row_shr:2', 'row_shr:4', 'row_shr:8'):
        a(f'{op}_dpp v{v}, v{v}, v{v} {c} row_mask:0xf bank_mask:0xf')
    a(f'{op}_dpp v{v}, v{v}, v{v} row_bcast:15 row_mask:0xa bank_mask:0xf')
    a(f'{op}_dpp v{v}, v{v}, v{v} row_bcast:31 row_mask:0xc bank_mask:0xf')

def ovf_push(a, ve, tag):
    a(f'''
    v_mov_b32 v40, 0
    v_mov_b32 v41, 1
    ds_read_b128 v[44:47], v40 offset:{WSUM}
    ds_read_b128 v[48:51], v40 offset:{WSUM+16}
    ds_read_b128 v[52:55], v40 offset:{WSUM+32}
    ds_read_b128 v[56:59], v40 offset:{WSUM+48}
    ds_add_rtn_u32 v42, v40, v41 offset:{OC}
    s_waitcnt lgkmcnt(0)
    ''')
    for r in range(44, 60, 2):
        a(f'v_add3_u32 v42, v42, v{r}, v{r+1}')
    a(f'''
    v_lshlrev_b32 v42, 2, v42
    v_add_u32 v42, {OFF_OVF}, v42
    global_store_dword v42, v{ve}, s[4:5]
    ''')

import os
HV = os.environ.get('HV', '')
RST = ''
if 'nors' in HV:
    for k in range(5):
        RST += f'v_add_u32 v44, {HSZ}, v44\nglobal_store_dwordx4 v44, v[36:39], s[4:5] {"" if "rpl" in HV else "sc1"}\n'
def gen_k2():
    a = Asm(); a.name = 'k2'
    a(f'''
    s_cmp_ge_u32 s2, {NG}
    s_cbranch_scc1 k2_end
    s_load_dwordx2 s[4:5], s[0:1], 88
    v_lshrrev_b32 v1, 2, v0                 ; chunk c
    v_and_b32 v2, 3, v0                     ; q
    s_lshl_b32 s3, s2, 2
    s_add_u32 s3, s3, {OFF_OFFS}
    v_min_u32 v5, {NCH-1}, v1
    v_lshl_add_u32 v3, v5, 10, s3
    v_mul_u32_u24 v5, {CH*4}, v5
    v_lshl_add_u32 v5, v2, 4, v5
    v_add_u32 v5, {OFF_EDG}, v5             ; edg + c*6400 + q*16
    v_lshlrev_b32 v6, 3, v0
    v_mov_b32 v8, -1
    v_mov_b32 v9, -1
    s_waitcnt lgkmcnt(0)
    global_load_dword v4, v3, s[4:5]
    ds_write_b64 v6, v[8:9] offset:{SCH}
    v_mov_b32 v10, 0
    v_mov_b32 v11, 0
    v_cmp_gt_u32 vcc, {(OC+16-LB)//8}, v0
    s_and_saveexec_b64 s[6:7], vcc
    ds_write_b64 v6, v[10:11] offset:{LB}
    s_mov_b64 exec, -1
    v_cmp_gt_u32 vcc, {NCH}, v1
    v_lshrrev_b32 v7, 6, v0
    v_lshlrev_b32 v7, 2, v7                 ; wave*4
    v_mov_b32 v30, 1
    s_waitcnt vmcnt(0)
    ''')
    a.stamp(1)
    a(f'''
    v_cndmask_b32 v4, 0, v4, vcc
    v_and_b32 v12, 0xffff, v4               ; start
    v_lshrrev_b32 v13, 16, v4               ; end
    v_sub_u32 v13, v13, v12
    v_lshlrev_b32 v14, 2, v2
    v_sub_u32 v13, v13, v14
    v_lshl_add_u32 v5, v12, 2, v5
    global_load_dwordx4 v[16:19], v5, s[4:5]
    v_cmp_lt_i32 vcc, 16, v13
    s_and_saveexec_b64 s[6:7], vcc
    s_cbranch_execz k2_a
    global_load_dwordx4 v[20:23], v5, s[4:5] offset:64
    k2_a:
    s_mov_b64 exec, -1
    v_cmp_eq_u32 vcc, 0, v2
    v_cndmask_b32 v12, 0, v12, vcc
    ''')
    wave_red(a, 'v_add_u32', 12)
    a(f'''
    s_mov_b32 exec_lo, 0
    s_brev_b32 exec_hi, 1
    ds_write_b32 v7, v12 offset:{WSUM}
    s_mov_b64 exec, -1
    s_waitcnt lgkmcnt(0)
    s_barrier
    s_waitcnt vmcnt(0)
    ''')
    a.stamp(2)
    a('''
    k2_loop:
    s_waitcnt vmcnt(0)
    ''')
    E0 = 16; B0 = 24; A0 = 32; O0 = 36
    for k in range(4):
        a(f'''
        v_cmp_lt_i32 s[{10+2*k}:{11+2*k}], {k}, v13
        v_lshlrev_b32 v{B0+k}, v{E0+k}, v30
        v_lshrrev_b32 v{A0+k}, 3, v{E0+k}
        v_and_b32 v{A0+k}, 0x1f8, v{A0+k}
        ''')
    for k in range(4):
        a(f'''
        s_mov_b64 exec, s[{10+2*k}:{11+2*k}]
        ds_or_rtn_b32 v{O0+k}, v{A0+k}, v{B0+k} offset:{LB}
        ''')
    for k in range(4):
        a(f'''
        s_mov_b64 exec, s[{10+2*k}:{11+2*k}]
        v_and_b32 v28, 0xfff, v{E0+k}
        v_lshlrev_b32 v28, 1, v28
        v_lshrrev_b32 v29, 12, v{E0+k}
        v_and_b32 v29, 0x1f8, v29
        {'s_waitcnt lgkmcnt(0)' if k == 0 else ''}
        v_and_b32 v31, v{O0+k}, v{B0+k}
        v_cmp_eq_u32 vcc, 0, v31
        s_andn2_b64 s[{10+2*k}:{11+2*k}], exec, vcc
        s_mov_b64 exec, vcc
        ds_write_b16_d16_hi v28, v{E0+k} offset:{SCH}
        ds_or_b32 v29, v{B0+k} offset:{RB}
        s_mov_b64 exec, s[{10+2*k}:{11+2*k}]
        ds_add_rtn_u32 v{O0+k}, v{A0+k}, v30 offset:{XC}
        ''')
    for k in range(4):
        a(f'''
        s_mov_b64 exec, s[{10+2*k}:{11+2*k}]
        v_and_b32 v28, 0xfc0, v{E0+k}
        {'s_waitcnt lgkmcnt(0)' if k == 0 else ''}
        v_add_lshl_u32 v28, v28, v{O0+k}, 1
        v_cmp_gt_u32 vcc, 64, v{O0+k}
        s_andn2_b64 s[{10+2*k}:{11+2*k}], exec, vcc
        s_mov_b64 exec, vcc
        ds_write_b16_d16_hi v28, v{E0+k} offset:{XL}
        ''')
    a(f'''
    s_or_b64 s[6:7], s[10:11], s[12:13]
    s_or_b64 s[8:9], s[14:15], s[16:17]
    s_or_b64 s[6:7], s[6:7], s[8:9]
    s_cbranch_scc1 k2_slow1
    k2_b:
    s_mov_b64 exec, -1
    v_subrev_u32 v13, 16, v13
    v_cmp_lt_i32 vcc, 0, v13
    s_cbranch_vccz k2_p2
    v_mov_b32 v16, v20
    v_mov_b32 v17, v21
    v_mov_b32 v18, v22
    v_mov_b32 v19, v23
    v_add_u32 v5, 64, v5
    v_cmp_lt_i32 vcc, 16, v13
    s_and_saveexec_b64 s[6:7], vcc
    s_cbranch_execz k2_c
    global_load_dwordx4 v[20:23], v5, s[4:5] offset:64
    k2_c:
    s_mov_b64 exec, -1
    s_branch k2_loop
    k2_slow1:
    ''')
    for k in range(4):
        a(f'''
        s_mov_b64 exec, s[{10+2*k}:{11+2*k}]
        s_cbranch_execz k2_s1_{k}
        ''')
        ovf_push(a, E0+k, f's1{k}')
        a(f'k2_s1_{k}:')
    a('s_branch k2_b')
    a(f'''
    k2_p2:
    v_lshrrev_b32 v44, 5, v0
    v_and_b32 v45, 31, v0
    v_mul_u32_u24 v44, {SLB}, v44
    v_lshl_add_u32 v44, v45, 4, v44
    s_lshl_b32 s3, s2, 9
    s_add_u32 s3, s3, {OFF_G + HSZ}
    v_add_u32 v44, s3, v44
    v_mov_b32 v36, 0
    v_mov_b32 v37, 0
    v_mov_b32 v38, 0
    v_mov_b32 v39, 0
    global_store_dwordx4 v44, v[36:39], s[4:5] sc1
    {RST}
    v_and_b32 v1, 63, v0                    ; lane
    v_lshlrev_b32 v2, 3, v1
    v_lshrrev_b32 v3, 4, v0                 ; node i
    v_and_b32 v4, 15, v0                    ; w
    v_lshlrev_b32 v5, 3, v3
    v_lshlrev_b32 v6, 7, v3
    v_lshl_add_u32 v7, v4, 1, v6
    s_waitcnt lgkmcnt(0)
    ''')
    a.stamp(3)
    a('s_barrier')
    a.stamp(4)
    a(f'''
    ds_read_b32 v8, v2 offset:{LB}
    ds_read_b32 v9, v2 offset:{XC}
    ds_read_u16 v16, v7 offset:{XL}
    ds_read_u16 v17, v7 offset:{XL+32}
    ds_read_u16 v18, v7 offset:{XL+64}
    ds_read_u16 v19, v7 offset:{XL+96}
    ds_read_b64 v[10:11], v5 offset:{LB}
    ds_read_b32 v12, v5 offset:{XC}
    v_lshrrev_b32 v15, 5, v3                ; h
    v_lshlrev_b32 v15, 3, v15               ; h*8
    v_mul_u32_u24 v20, 11, v3
    v_lshl_add_u32 v20, v4, 2, v20
    v_and_b32 v20, 63, v20
    s_waitcnt lgkmcnt(6)
    v_bcnt_u32_b32 v8, v8, v9
    ''')
    for k in range(4):
        a(f'''
        s_waitcnt lgkmcnt({5-k})
        v_and_b32 v21, 31, v{16+k}
        v_lshl_add_u32 v21, v21, 4, v15
        v_lshl_or_b32 v{16+k}, v21, 16, v{16+k}
        ''')
        if k == 0:
            a(f'ds_read_b64 v[24:25], v21 offset:{RB}')
    wave_red(a, 'v_max_u32', 8)
    a(f'''
    v_readlane_b32 s10, v8, 63
    s_add_u32 s10, s10, {3+SLACK}
    s_and_b32 s10, s10, -4
    s_max_u32 s10, s10, 32
    s_min_u32 s10, s10, 64                  ; St
    s_sub_u32 s11, s10, 32
    s_lshl_b64 s[12:13], 1, s11
    s_sub_u32 s12, s12, 1
    s_mul_i32 s14, s10, {RSTEP}
    s_lshr_b32 s14, s14, 6
    s_sub_u32 s15, s14, s10
    v_mul_u32_u24 v20, s10, v20
    v_lshrrev_b32 v20, 6, v20               ; o
    s_waitcnt lgkmcnt(0)
    v_bcnt_u32_b32 v21, v10, 0
    v_sub_u32 v21, s10, v21                 ; capacity
    v_min_u32 v12, 64, v12
    v_min_u32 v13, v21, v12                 ; nx
    v_cmp_lt_u32 vcc, v13, v12
    s_cbranch_vccnz k2_slow2
    k2_d:
    ''')
    a.stamp(5)
    a(f'''
    v_sub_u32 v13, v13, v4
    v_mov_b32 v14, 0                        ; fails
    v_cmp_lt_i32 vcc, 0, v13
    s_and_b64 exec, vcc, vcc
    s_cbranch_execz k2_p3
    k2_round:
    v_bitop3_b32 v26, v10, v24, v24 bitop3:0x03
    v_bitop3_b32 v27, v11, v25, s12 bitop3:0x02
    v_cmp_eq_u64 vcc, 0, v[26:27]
    v_cndmask_b32 v28, 0, {EPAT}, vcc
    v_add_u32 v14, v14, v28
    v_cmp_le_u32 s[16:17], {PAT}, v14       ; force
    v_not_b32 v28, v10
    v_bitop3_b32 v29, v11, v11, s12 bitop3:0x02
    s_and_b64 vcc, vcc, s[16:17]
    v_cndmask_b32 v26, v26, v28, vcc
    v_cndmask_b32 v27, v27, v29, vcc
    v_lshlrev_b64 v[28:29], v20, -1
    v_and_b32 v28, v28, v26
    v_and_b32 v29, v29, v27
    v_cmp_ne_u64 vcc, 0, v[28:29]
    v_cndmask_b32 v26, v26, v28, vcc
    v_cndmask_b32 v27, v27, v29, vcc
    v_ffbl_b32 v28, v26
    v_ffbl_b32 v29, v27
    v_or_b32 v29, 32, v29
    v_min_u32 v28, v28, v29                 ; t or -1
    v_lshlrev_b64 v[32:33], v28, 1
    v_and_b32 v32, v32, v26
    v_and_b32 v33, v33, v27
    v_lshrrev_b32 v22, 16, v16
    v_lshrrev_b32 v23, 16, v17
    ds_or_rtn_b64 v[10:11], v5, v[32:33] offset:{LB}
    ds_or_rtn_b64 v[24:25], v22, v[32:33] offset:{RB}
    ds_read_b64 v[34:35], v23 offset:{RB}
    v_cmp_le_i32 s[18:19], 0, v28           ; has
    v_lshl_add_u32 v29, v28, 1, v6
    v_add_u32 v26, s14, v20
    v_add_u32 v27, s15, v20
    v_min_u32 v20, v26, v27
    v_add_u32 v14, 1, v14
    s_waitcnt lgkmcnt(2)
    v_and_b32 v26, v10, v32
    v_and_or_b32 v26, v11, v33, v26
    v_cmp_eq_u32 s[20:21], 0, v26           ; okl
    v_or_b32 v10, v10, v32
    v_or_b32 v11, v11, v33
    s_waitcnt lgkmcnt(0)
    v_and_b32 v26, v24, v32
    v_and_or_b32 v26, v25, v33, v26
    v_cmp_eq_u32 vcc, 0, v26                ; okr
    s_mov_b64 s[24:25], exec
    s_or_b64 s[22:23], vcc, s[16:17]
    s_and_b64 s[22:23], s[22:23], s[20:21]
    s_and_b64 s[22:23], s[22:23], s[18:19]  ; success
    s_andn2_b64 exec, s[20:21], s[22:23]
    ds_xor_b64 v5, v[32:33] offset:{LB}
    s_andn2_b64 exec, vcc, s[22:23]
    ds_xor_b64 v22, v[32:33] offset:{RB}
    s_mov_b64 exec, s[22:23]
    ds_write_b16 v29, v16 offset:{SCH}
    v_mov_b32 v16, v17
    v_mov_b32 v17, v18
    v_mov_b32 v18, v19
    v_mov_b32 v14, 0
    v_subrev_u32 v13, 16, v13
    v_mov_b32 v24, v34
    v_mov_b32 v25, v35
    s_mov_b64 exec, s[24:25]
    v_cmp_lt_i32 vcc, 0, v13
    s_and_b64 exec, vcc, vcc
    s_cbranch_execnz k2_round
    k2_p3:
    s_mov_b64 exec, -1
    v_and_b32 v8, 31, v1
    v_lshrrev_b32 v9, 5, v1
    v_lshlrev_b32 v8, 4, v8
    v_lshl_add_u32 v8, v9, 3, v8
    v_lshrrev_b32 v10, 6, v0
    v_readfirstlane_b32 s11, v10            ; wave
    s_lshr_b32 s12, s11, 3
    s_lshl_b32 s12, s12, 2
    v_add_u32 v8, s12, v8
    s_and_b32 s12, s11, 7
    s_lshl_b32 s12, s12, 2
    s_waitcnt lgkmcnt(0)
    ''')
    a.stamp(6)
    a('s_barrier')
    a.stamp(7)
    a(f'''
    ds_read_b32 v10, v8 offset:{RB}
    v_lshlrev_b32 v9, 7, v9
    s_lshl_b32 s13, s11, 3
    v_add_u32 v9, s13, v9
    s_waitcnt lgkmcnt(0)
    v_lshrrev_b32 v10, s12, v10
    ''')
    for k in range(4):
        a(f'''
        v_and_b32 v11, {1<<k}, v10
        v_cmp_ne_u32 s[{16+2*k}:{17+2*k}], 0, v11
        ''')
    for k in range(8):
        a(f'''
        s_ff0_i32_b32 s{16+k}, s{16+k}
        s_and_b32 s{16+k}, s{16+k}, 31
        ''')
    padc = (NP - 32) * 0x10001
    a(f'''
    s_pack_ll_b32_b16 s24, s16, s18
    s_pack_ll_b32_b16 s25, s20, s22
    s_pack_ll_b32_b16 s26, s17, s19
    s_pack_ll_b32_b16 s27, s21, s23
    s_add_u32 s24, s24, {padc}
    s_add_u32 s25, s25, {padc}
    s_add_u32 s26, s26, {padc}
    s_add_u32 s27, s27, {padc}
    v_mov_b32 v12, s24
    v_mov_b32 v13, s25
    v_writelane_b32 v12, s26, 32
    v_writelane_b32 v13, s27, 32
    s_mov_b32 exec_lo, 1
    s_mov_b32 exec_hi, 1
    ds_write_b64 v9, v[12:13] offset:{PAD}
    s_mov_b64 exec, -1
    s_waitcnt lgkmcnt(0)
    s_barrier
    s_cmp_ge_u32 s11, 9
    s_cbranch_scc1 k2_end
    s_cmp_eq_u32 s11, 8
    s_cbranch_scc1 k2_meta
    v_lshlrev_b32 v1, 4, v0
    v_and_b32 v2, 7, v0                     ; q
    v_lshrrev_b32 v3, 8, v0                 ; h
    v_lshlrev_b32 v3, 7, v3
    v_lshl_add_u32 v3, v2, 4, v3
    ds_read_b128 v[8:11], v1 offset:{SCH}
    ds_read_b128 v[12:15], v3 offset:{PAD}
    v_lshrrev_b32 v4, 3, v0                 ; node
    v_lshlrev_b32 v4, 4, v4
    v_lshl_add_u32 v4, v2, 10, v4
    s_lshl_b32 s12, s2, 13
    s_add_u32 s12, s12, {OFF_SCHED}
    v_add_u32 v4, s12, v4
    v_lshlrev_b32 v2, 3, v2
    v_cmp_gt_u32 vcc, s10, v2
    s_and_b64 exec, vcc, vcc
    s_waitcnt lgkmcnt(0)
    v_pk_min_u16 v8, v8, v12
    v_pk_min_u16 v9, v9, v13
    v_pk_min_u16 v10, v10, v14
    v_pk_min_u16 v11, v11, v15
    global_store_dwordx4 v4, v[8:11], s[4:5]
    s_endpgm
    k2_meta:
    v_mov_b32 v40, 0
    ds_read_b128 v[44:47], v40 offset:{WSUM}
    ds_read_b128 v[48:51], v40 offset:{WSUM+16}
    ds_read_b128 v[52:55], v40 offset:{WSUM+32}
    ds_read_b128 v[56:59], v40 offset:{WSUM+48}
    ds_read_b32 v42, v40 offset:{OC}
    v_mov_b32 v41, 0
    v_mov_b32 v43, 0
    s_lshl_b32 s12, s2, 4
    s_add_u32 s12, s12, {OFF_META}
    v_mov_b32 v4, s12
    s_waitcnt lgkmcnt(0)
    ''')
    for r in range(44, 60, 2):
        a(f'v_add3_u32 v41, v41, v{r}, v{r+1}')
    a(f'''
    v_mov_b32 v40, s10
    s_mov_b64 exec, 1
    global_store_dwordx4 v4, v[40:43], s[4:5]
    s_endpgm
    k2_slow2:
    ''')
    for k in range(4):
        a(f'''
        v_add_u32 v21, {16*k}, v4
        v_cmp_ge_u32 vcc, v21, v13
        v_cmp_lt_u32 s[16:17], v21, v12
        s_and_b64 exec, vcc, s[16:17]
        s_cbranch_execz k2_s2_{k}
        v_lshlrev_b32 v22, 6, v3
        v_lshl_or_b32 v22, v{16+k}, 16, v22
        ''')
        ovf_push(a, 22, f's2{k}')
        a(f'''
        k2_s2_{k}:
        s_mov_b64 exec, -1
        ''')
    a('s_branch k2_d')
    a('k2_end:')
    a('s_endpgm')
    return a
```

```python
from asmlib import *
from common import *
import os
CV = os.environ.get('CV', '')

C_GRID = 256
XFO = 65536
SCRB = 69632
SCRW = 768
C_LDS = SCRB + 16 * SCRW
NT_MAIN = 6144
NT = N // 2

VF, VXF, VW1, VR1, VW2, VR2, VLD, VST, VMK = 1, 2, 3, 4, 5, 6, 7, 8, 9
XD = 10
M0_, M1_, M2_, M3_, M4_, M5_ = 14, 15, 16, 17, 18, 19
TB = 20
UB = 46
ACC = 72
FB = 104
NF = 6
def T(m): return TB + 2 + 6 * m
def AC(i): return ACC + 4 * i
def R4(b): return f'v[{b}:{b+3}]'
USLOT = [0, 4, 6, 10, 12, 16, 18, 22]
def U(c): return UB + USLOT[c]
def WIN(m): return UB + 4 + 6 * m
OMAP = [5, 4, 6, 7, 0, 1, 2, 3]
def O(c): return AC(OMAP[c])

class DS:
    def __init__(self, a): self.a = a; self.n = 0; self.done = 0; self.tag = {}
    def op(self, text, tag=None):
        self.a(text); self.n += 1
        if tag is not None: self.tag[tag] = self.n
    def wait(self, tag):
        i = self.tag[tag]
        if i > self.done:
            k = self.n - i
            assert k <= 15
            self.a(f's_waitcnt lgkmcnt({k})'); self.done = i

def tloads(a):
    for i in range(8):
        r = T(i >> 1) + 2 * (i & 1)
        a(f'global_load_dwordx2 v[{r}:{r+1}], v{VLD}, s[{16+2*i}:{17+2*i}]')

def body(a):
    ds = DS(a)
    frs = [('x', m) for m in range(4)] + [('q', i) for i in range(32)] + [('v', i) for i in range(32)]
    st = {'n': 0}
    def fissue():
        i = st['n']
        if i >= len(frs): return
        k, j = frs[i]
        b = FB + 4 * (i % NF)
        if k == 'x': ds.op(f'ds_read_b128 {R4(b)}, v{VXF} offset:{j*1024}', ('f', i))
        else: ds.op(f'ds_read_b128 {R4(b)}, v{VF} offset:{(j + (32 if k == "v" else 0))*1024}', ('f', i))
        st['n'] += 1
    for _ in range(NF - 1): fissue()
    a('s_waitcnt vmcnt(1)')
    fill = []
    def F(txt):
        for l in txt.strip().split('\n'):
            l = l.strip()
            if l: fill.append(l)
    def drain(n=None):
        k = 0
        while fill and (n is None or k < n):
            x = fill.pop(0)
            if callable(x): x()
            else: a(x); k += 1
    fi = {'n': 0}
    def gm(d, m, first, kind, nfill):
        i = fi['n']; fi['n'] += 1
        b = FB + 4 * (i % NF)
        fissue()
        ds.wait(('f', i))
        c = '0' if first else R4(d)
        if kind == 'A': a(f'v_mfma_f32_16x16x32_bf16 {R4(d)}, {R4(b)}, {R4(T(m))}, {c}')
        else: a(f'v_mfma_f32_16x16x32_bf16 {R4(d)}, {R4(T(m))}, {R4(b)}, {c}')
        drain(nfill)
    S_ = AC(4); RR = AC(5); X1R = AC(6); X2R = AC(7)
    RS = XD
    for m in range(4):
        for q in range(4):
            r = T(m) + q; acc = M0_ + (q & 1)
            if m == 0 and q < 2: F(f'v_dot2_f32_bf16 v{acc}, v{r}, v{r}, {"s11" if q == 0 else "0"}')
            else: F(f'v_dot2_f32_bf16 v{acc}, v{r}, v{r}, v{acc}')
    for m in range(4): gm(XD, m, m == 0, 'A', 2)
    def qcvt(c):
        w = WIN(c >> 1) + 2 * (c & 1); s = AC(c & 3)
        F(f'v_cvt_pk_bf16_f32 v{w}, v{s}, v{s+1}\nv_cvt_pk_bf16_f32 v{w+1}, v{s+2}, v{s+3}')
    def smf(m):
        a(f'v_mfma_f32_16x16x32_bf16 {R4(S_)}, {R4(T(m))}, {R4(WIN(m))}, {"0" if m == 0 else R4(S_)}')
    for c in range(8):
        if c == 1:
            fill.append(lambda: ds.op(f'ds_write_b32 v{VW1}, v{XD+3}'))
            F(f'''
            v_add_f32 v{M0_}, v{M0_}, v{M1_}
            v_mov_b32 v{M1_}, v{M0_}
            v_permlane16_swap_b32 v{M0_}, v{M1_}
            v_add_f32 v{M0_}, v{M0_}, v{M1_}
            v_mov_b32 v{M1_}, v{M0_}
            v_permlane32_swap_b32 v{M0_}, v{M1_}
            v_add_f32 v{M0_}, v{M0_}, v{M1_}
            v_mul_f32 v{M0_}, s12, v{M0_}
            v_fma_f32 v{M0_}, -v{XD}, v{XD}, v{M0_}
            v_max_f32 v{M0_}, s14, v{M0_}
            v_rsq_f32 v{RS}, v{M0_}
            ''')
            fill.append(lambda: ds.op(f'ds_write_b32 v{VW1}, v{RS} offset:256', 'wrs'))
        if c >= 2: pass
        for m in range(4):
            if m == 2 and c >= 1: qcvt(c - 1)
            gm(AC(c & 3), m, m == 0, 'A', 2)
        if c in (2, 4, 6):
            drain(); smf(c // 2 - 1)
        if c == 5:
            ds.op(f'ds_read_b128 {R4(RR)}, v{VR1} offset:256', 'rr')
            ds.op(f'ds_read_b128 {R4(X1R)}, v{VR1}', 'x1r')
            ds.op(f'ds_read_b128 {R4(X2R)}, v{VR1} offset:64', 'x2r')
    def ucvt(c):
        w = U(c); s = AC(c & 3)
        F(f'v_cvt_pk_bf16_f32 v{w}, v{s}, v{s+1}\nv_cvt_pk_bf16_f32 v{w+1}, v{s+2}, v{s+3}')
    def omf(c):
        m = c >> 1
        A_ = T(m) - 2 if (c & 1) == 0 else T(m) + 2
        B_ = U(c) if (c & 1) == 0 else U(c) - 2
        a(f'v_mfma_f32_16x16x32_bf16 {R4(O(c))}, {R4(A_)}, {R4(B_)}, 0')
    def ssq2(c):
        for r in range(4):
            if c == 0: F(f'v_mul_f32 v{M2_+r}, v{O(c)+r}, v{O(c)+r}')
            else: F(f'v_fmac_f32 v{M2_+r}, v{O(c)+r}, v{O(c)+r}')
    MX, TM = M0_, M1_
    for m in range(4):
        if m == 2: qcvt(7)
        gm(AC(0), m, m == 0, 'B', 2)
    drain(); smf(3)
    for c in range(1, 4):
        for m in range(4):
            if m == 2: ucvt(c - 1)
            if c == 1 and m == 2:
                fill.append(lambda: ds.wait('rr'))
                for r in range(4): F(f'v_mul_f32 v{S_+r}, v{S_+r}, v{RR+r}')
                F(f'''
                v_max3_f32 v{MX}, v{S_}, v{S_+1}, v{S_+2}
                v_max_f32 v{MX}, v{MX}, v{S_+3}
                v_mov_b32 v{TM}, v{MX}
                v_permlane16_swap_b32 v{MX}, v{TM}
                v_max_f32 v{MX}, v{MX}, v{TM}
                v_mul_f32 v{MX}, v{MX}, v{RS}
                ''')
                for r in range(4): F(f'v_fma_f32 v{S_+r}, v{S_+r}, v{RS}, -v{MX}')
                for r in range(4): F(f'v_exp_f32 v{S_+r}, v{S_+r}')
                F(f'''
                v_add_f32 v{MX}, v{S_}, v{S_+1}
                v_add_f32 v{TM}, v{S_+2}, v{S_+3}
                v_add_f32 v{MX}, v{MX}, v{TM}
                v_mul_f32 v{S_}, v{S_}, v{RR}
                v_mov_b32 v{TM}, v{MX}
                v_mul_f32 v{S_+1}, v{S_+1}, v{RR+1}
                v_mul_f32 v{S_+2}, v{S_+2}, v{RR+2}
                v_permlane16_swap_b32 v{MX}, v{TM}
                v_add_f32 v{MX}, v{MX}, v{TM}
                v_rcp_f32 v{MX}, v{MX}
                v_mul_f32 v{S_+3}, v{S_+3}, v{RR+3}
                v_mul_f32 v{MX}, v{MX}, v{VMK}
                ''')
                for r in range(4): F(f'v_mul_f32 v{S_+r}, v{S_+r}, v{MX}')
                for sl in range(5):
                    F(f'v_cvt_pk_bf16_f32 v{TB+6*sl}, v{S_}, v{S_+1}\nv_cvt_pk_bf16_f32 v{TB+6*sl+1}, v{S_+2}, v{S_+3}')
                fill.append(lambda: ds.wait('x2r'))
                for r in range(4):
                    F(f'v_fmac_f32 v{XD+1}, v{S_+r}, v{X1R+r}\nv_fmac_f32 v{XD+2}, v{S_+r}, v{X2R+r}')
                F(f'''
                v_permlane16_swap_b32 v{XD+1}, v{XD+2}
                v_add_f32 v{XD+1}, v{XD+1}, v{XD+2}
                ''')
                fill.append(lambda: ds.op(f'ds_write_b32 v{VW2}, v{XD+1}'))
            gm(AC(c & 3), m, m == 0, 'B', 5)
    for c in range(4, 8):
        for m in range(4):
            if m == 2: ucvt(c - 1)
            if m == 0: drain()
            gm(AC(c & 3), m, m == 0, 'B', 3)
        if c == 4:
            omf(0); omf(1)
            ds.op(f'ds_read_b64 v[{XD}:{XD+1}], v{VR2}', 'md')
        if c == 5:
            drain(); omf(2); omf(3); ssq2(0); ssq2(1)
        if c == 6:
            drain(); omf(4); omf(5); ssq2(2); ssq2(3)
    drain(); omf(6)
    ssq2(4); drain(4)
    ucvt(7); ssq2(5); drain(2)
    drain(2)
    omf(7)
    drain()
    a(f'''
    s_cmp_eq_u32 s9, 0
    s_cbranch_scc1 c_nold
    v_add_u32 v{VLD}, s9, v{VLD}
    ''')
    tloads(a)
    a('c_nold:')
    ssq2(6); ssq2(7); drain()
    q0, q1, q2, q3 = M2_, M3_, M4_, M5_
    dp = 'row_mask:0xf bank_mask:'
    a(f'''
    v_add_f32_dpp v{q0}, v{q0}, v{q0} row_ror:8 {dp}0x3
    v_add_f32_dpp v{q1}, v{q1}, v{q1} row_ror:8 {dp}0x3
    v_add_f32_dpp v{q0}, v{q2}, v{q2} row_ror:8 {dp}0xc
    v_add_f32_dpp v{q1}, v{q3}, v{q3} row_ror:8 {dp}0xc
    v_add_f32_dpp v{q0}, v{q0}, v{q0} row_shl:4 {dp}0x5
    v_add_f32_dpp v{q0}, v{q1}, v{q1} row_shr:4 {dp}0xa
    v_add_f32_dpp v{q0}, v{q0}, v{q0} quad_perm:[1,0,3,2] {dp}0xf
    v_add_f32_dpp v{q0}, v{q0}, v{q0} quad_perm:[2,3,0,1] {dp}0xf
    ''')
    ds.wait('md')
    a(f'''
    v_fma_f32 v{q1}, -v{XD}, s10, v{XD+1}
    v_mul_f32 v{q0}, s12, v{q0}
    v_fma_f32 v{q0}, -v{XD}, v{XD}, v{q0}
    v_max_f32 v{q0}, 0, v{q0}
    v_add_f32 v{q0}, s14, v{q0}
    v_rsq_f32 v{q0}, v{q0}
    v_mul_f32 v{q1}, s13, v{q1}
    v_mul_f32 v{q1}, v{q1}, v{q0}
    v_max_f32_dpp v{q0}, v{q1}, v{q1} row_ror:4 {dp}0xf
    v_max_f32_dpp v{q0}, v{q0}, v{q0} row_ror:8 {dp}0xf
    v_mov_b32 v{q2}, v{q0}
    v_permlane16_swap_b32 v{q0}, v{q2}
    v_max_f32 v{q0}, v{q0}, v{q2}
    v_sub_f32 v{q1}, v{q1}, v{q0}
    v_exp_f32 v{q1}, v{q1}
    v_add_f32_dpp v{q0}, v{q1}, v{q1} row_ror:4 {dp}0xf
    v_add_f32_dpp v{q0}, v{q0}, v{q0} row_ror:8 {dp}0xf
    v_mov_b32 v{q2}, v{q0}
    v_permlane16_swap_b32 v{q0}, v{q2}
    v_add_f32 v{q0}, v{q0}, v{q2}
    v_rcp_f32 v{q0}, v{q0}
    v_mul_f32 v{q1}, v{q1}, v{q0}
    ''')
    Y = [FB + c for c in range(8)]
    for r in range(4):
        for c in range(8):
            op = 'v_mul_f32_dpp' if r == 0 else 'v_fmac_f32_dpp'
            a(f'{op} v{Y[c]}, v{q1}, v{O(c)+r} row_newbcast:{4*r} {dp}0xf')
    for c in range(4): a(f'v_permlane16_swap_b32 v{Y[c]}, v{Y[c+4]}')
    for c in range(4): a(f'v_add_f32 v{Y[c]}, v{Y[c]}, v{Y[c+4]}')
    a(f'''
    v_cvt_pk_bf16_f32 v{q2}, v{Y[0]}, v{Y[1]}
    v_cvt_pk_bf16_f32 v{q3}, v{Y[2]}, v{Y[3]}
    global_store_dwordx2 v{VST}, v[{q2}:{q3}], s[6:7]
    ''')

def gen_c():
    a = Asm(); a.name = 'c'
    a(f'''
    s_cmp_ge_u32 s2, {C_GRID}
    s_cbranch_scc1 c_end
    s_load_dwordx2 s[4:5], s[0:1], 88
    s_load_dwordx2 s[6:7], s[0:1], 72
    v_lshrrev_b32 v10, 6, v0
    v_and_b32 v11, 63, v0                    ; lane
    v_readfirstlane_b32 s3, v10              ; wave
    v_lshlrev_b32 v{VF}, 4, v11
    v_and_b32 v12, 15, v11                   ; k / e'
    v_lshrrev_b32 v13, 4, v11                ; g
    v_and_b32 v14, 7, v11                    ; hop
    v_bfe_u32 v15, v11, 3, 1                 ; q
    s_mul_i32 s8, s2, 24
    s_add_u32 s8, s8, s3
    s_cmp_lt_u32 s3, 8
    s_cselect_b32 s9, 256, 0
    s_mul_i32 s15, s2, 23
    s_sub_u32 s15, {NT_MAIN - 8}, s15        ; (6144+b) - (24b+8)
    s_lshl_b32 s15, s15, 4
    s_cmp_lt_u32 s2, {NT - NT_MAIN}
    s_cselect_b32 s15, s15, 0
    s_cmp_eq_u32 s3, 8
    s_cselect_b32 s9, s15, s9
    v_mul_u32_u24 v{VLD}, {HSZ}, v14
    v_mul_u32_u24 v16, {SLB}, v13
    v_lshl_add_u32 v16, v15, 3, v16
    s_lshl_b32 s15, s8, 4
    v_add3_u32 v{VLD}, v{VLD}, v16, s15
    s_lshl_b32 s32, s3, 12
    s_add_u32 s33, s32, {OFF_W}
    v_add_u32 v16, s33, v{VF}
    s_mov_b32 m0, s32
    s_waitcnt lgkmcnt(0)
    global_load_lds_dwordx4 v16, s[4:5]
    global_load_lds_dwordx4 v16, s[4:5] offset:1024
    global_load_lds_dwordx4 v16, s[4:5] offset:2048
    global_load_lds_dwordx4 v16, s[4:5] offset:3072
    s_cmp_ge_u32 s3, 4
    s_cbranch_scc1 c_nox
    s_lshl_b32 s32, s3, 10
    s_add_u32 s32, s32, {XFO}
    s_mov_b32 m0, s32
    s_add_u32 s33, s32, {OFF_W}
    v_add_u32 v16, s33, v{VF}
    global_load_lds_dwordx4 v16, s[4:5]
    c_nox:
    s_mov_b32 s33, {OFF_W + W_S}
    s_load_dword s10, s[4:5], s33
    ''')
    for i in range(8):
        a(f'''
        s_add_u32 s{16+2*i}, s4, {OFF_H + 4*i*SLB}
        s_addc_u32 s{17+2*i}, s5, 0
        ''')
    if 'bar' in CV: a('s_barrier')
    if 'prio' in CV:
        a('''
        s_cmp_eq_u32 s9, 0
        s_cbranch_scc1 c_np
        s_setprio 2
        c_np:
        ''')
    if 'coal' in CV:
        a(f'''
        s_lshr_b32 s32, s3, 1
        s_mul_i32 s32, s32, {HSZ}
        s_and_b32 s33, s3, 1
        s_mul_i32 s33, s33, {16*SLB}
        s_add_u32 s32, s32, s33
        s_mul_i32 s33, s2, 384
        s_add_u32 s32, s32, s33
        v_mul_u32_u24 v16, {SLB}, v13
        v_lshl_add_u32 v16, v12, 4, v16
        v_add_u32 v16, s32, v16
        ''')
        for j in range(4):
            a(f'global_load_dwordx4 v[{T(j)}:{T(j)+3}], v16, s[{16+2*j}:{17+2*j}]')
        for j in range(4):
            a(f'global_load_dword v{FB+j}, v16, s[{16+2*j}:{17+2*j}]')
    else:
        tloads(a)
    a(f'''
    s_mov_b32 s11, {f32hex(32e-5)}
    s_mov_b32 s12, {f32hex(1.0/128)}
    s_mov_b32 s13, {f32hex(math.log2(math.e))}
    s_mov_b32 s14, {f32hex(1e-5)}
    s_mul_i32 s32, s3, {SCRW}
    s_add_u32 s32, s32, {SCRB}
    s_add_u32 s33, s32, 512
    v_add_u32 v{VXF}, {XFO}, v{VF}
    v_lshl_add_u32 v{VW1}, v11, 2, s32
    v_lshl_add_u32 v{VR1}, v13, 4, s32
    v_lshrrev_b32 v16, 2, v11
    v_lshl_add_u32 v{VR2}, v16, 3, s33
    v_lshrrev_b32 v16, 5, v11                ; g>>1
    v_xor_b32 v16, v16, v15
    v_cmp_eq_u32 vcc, 0, v16
    v_cndmask_b32 v{VMK}, 0, 1.0, vcc
    v_lshl_add_u32 v16, v16, 7, s33
    v_lshl_add_u32 v16, v12, 3, v16
    v_and_b32 v17, 1, v13
    v_lshl_add_u32 v{VW2}, v17, 2, v16
    s_lshl_b32 s15, s8, 9
    v_lshl_add_u32 v{VST}, v11, 3, s15
    v_and_b32 v16, 1, v11
    v_lshlrev_b32 v16, 4, v16
    v_mov_b32 v17, 0x3f80
    v_lshlrev_b32 v16, v16, v17
    v_lshrrev_b32 v17, 1, v12
    v_lshlrev_b32 v18, 1, v13
    v_cmp_eq_u32 vcc, v17, v18
    v_cndmask_b32 v{UB+2}, 0, v16, vcc
    v_add_u32 v18, 1, v18
    v_cmp_eq_u32 vcc, v17, v18
    v_cndmask_b32 v{UB+3}, 0, v16, vcc
    ''')
    for k in range(1, 4):
        a(f'v_mov_b32 v{UB+2+6*k}, v{UB+2}\nv_mov_b32 v{UB+3+6*k}, v{UB+3}')
    a('''
    s_waitcnt vmcnt(8) lgkmcnt(0)
    ''')
    a.stamp(1)
    a('s_barrier')
    a.stamp(2)
    a('s_waitcnt vmcnt(0)')
    a.stamp(3)
    a('c_loop:')
    body(a)
    a.stamp_if(4, 9, 256)
    a(f'''
    s_cmp_eq_u32 s9, 0
    s_cbranch_scc1 c_end
    s_lshl_b32 s9, s9, 5
    v_add_u32 v{VST}, s9, v{VST}
    s_mov_b32 s9, 0
    s_branch c_loop
    c_end:
    s_endpgm
    ''')
    return a
```

```python
from asmlib import *
from common import *

K1_W = 3
K1_SORT0 = 0
K1_GRID = NCH
K1_LDS = 2048 + CH * 4
W_LDS = 2 * 128 * 272 + 1024
NTR = 49
RS = 272
WB = 128 * RS
RM = 2 * WB

def xg_reduce(a, v, t):
    a(f'''
    v_mov_b32 v{t}, v{v}
    v_permlane16_swap_b32 v{v}, v{t}
    v_add_f32 v{v}, v{v}, v{t}
    v_mov_b32 v{t}, v{v}
    v_permlane32_swap_b32 v{v}, v{t}
    v_add_f32 v{v}, v{v}, v{t}
    ''')

def gen_k1():
    a = Asm(); a.name = 'k1'
    a(f'''
    s_cmp_ge_u32 s2, {K1_GRID}
    s_cbranch_scc1 k1_end
    s_load_dwordx4 s[8:11], s[0:1], 0
    s_load_dwordx2 s[12:13], s[0:1], 16
    s_load_dwordx2 s[26:27], s[0:1], 88
    ''')
    HIST = 0; START = 1024; SORTED = 2048
    a(f'''
    s_sub_u32 s3, s2, {K1_SORT0}
    s_mul_i32 s4, s3, {CH*4}
    v_lshlrev_b32 v1, 4, v0
    v_add_u32 v2, s4, v1
    v_lshlrev_b32 v3, 2, v0
    v_mov_b32 v4, 0
    v_mov_b32 v5, 1
    v_cmp_gt_u32 vcc, {CH//4}, v0
    s_mov_b64 s[28:29], vcc
    v_cmp_gt_u32 vcc, 256, v0
    s_and_saveexec_b64 s[30:31], vcc
    s_cbranch_execz k1s_a
    ds_write_b32 v3, v4 offset:{HIST}
    k1s_a:
    s_mov_b64 exec, s[28:29]
    s_waitcnt lgkmcnt(0)
    s_cbranch_execz k1s_b
    global_load_dwordx4 v[8:11], v2, s[10:11]
    global_load_dwordx4 v[12:15], v2, s[12:13]
    k1s_b:
    s_barrier
    s_cbranch_execz k1s_c
    s_waitcnt vmcnt(0)
    ''')
    a.stamp(1)
    for e in range(4):
        a(f'''
        v_lshrrev_b32 v{16+e}, 4, v{12+e}
        v_and_b32 v{16+e}, 0x3fc, v{16+e}
        ds_add_rtn_u32 v{20+e}, v{16+e}, v5 offset:{HIST}
        v_sub_u32 v24, v{8+e}, v{12+e}
        v_and_b32 v24, 31, v24
        v_and_b32 v25, 63, v{12+e}
        v_lshl_or_b32 v24, v25, 6, v24
        v_and_b32 v25, 32, v{12+e}
        v_lshl_or_b32 v24, v25, 10, v24
        v_lshl_or_b32 v{8+e}, v{8+e}, 16, v24
        ''')
    a(f'''
    s_waitcnt lgkmcnt(0)
    k1s_c:
    s_mov_b64 exec, -1
    s_barrier
    v_and_b32 v6, 63, v0
    v_lshlrev_b32 v6, 4, v6
    ds_read_b128 v[24:27], v6 offset:{HIST}
    s_waitcnt lgkmcnt(0)
    v_add_u32 v29, v24, v25
    v_add_u32 v30, v29, v26
    v_add_u32 v31, v30, v27
    v_mov_b32 v32, v31
    v_add_u32_dpp v32, v32, v32 row_shr:1 row_mask:0xf bank_mask:0xf bound_ctrl:0
    v_add_u32_dpp v32, v32, v32 row_shr:2 row_mask:0xf bank_mask:0xf bound_ctrl:0
    v_add_u32_dpp v32, v32, v32 row_shr:4 row_mask:0xf bank_mask:0xf bound_ctrl:0
    v_add_u32_dpp v32, v32, v32 row_shr:8 row_mask:0xf bank_mask:0xf bound_ctrl:0
    v_add_u32_dpp v32, v32, v32 row_bcast:15 row_mask:0xa bank_mask:0xf
    v_add_u32_dpp v32, v32, v32 row_bcast:31 row_mask:0xc bank_mask:0xf
    v_sub_u32 v36, v32, v31
    v_add_u32 v37, v36, v24
    v_add_u32 v38, v36, v29
    v_add_u32 v39, v36, v30
    ds_write_b128 v6, v[36:39] offset:{START}
    v_lshl_or_b32 v40, v37, 16, v36
    v_lshl_or_b32 v41, v38, 16, v37
    v_lshl_or_b32 v42, v39, 16, v38
    v_lshl_or_b32 v43, v32, 16, v39
    v_cmp_gt_u32 vcc, 64, v0
    s_and_saveexec_b64 s[30:31], vcc
    s_cbranch_execz k1s_d
    s_lshl_b32 s5, s3, 10
    s_add_u32 s5, s5, {OFF_OFFS}
    v_add_u32 v7, s5, v6
    global_store_dwordx4 v7, v[40:43], s[26:27]
    k1s_d:
    s_mov_b64 exec, s[28:29]
    s_waitcnt lgkmcnt(0)
    s_cbranch_execz k1s_e
    ''')
    for e in range(4):
        a(f'ds_read_b32 v{24+e}, v{16+e} offset:{START}')
    for e in range(4):
        a(f'''
        s_waitcnt lgkmcnt({3-e})
        v_add_lshl_u32 v{24+e}, v{24+e}, v{20+e}, 2
        ''')
    for e in range(4):
        a(f'ds_write_b32 v{24+e}, v{8+e} offset:{SORTED}')
    a(f'''
    s_waitcnt lgkmcnt(0)
    k1s_e:
    s_barrier
    s_cbranch_execz k1_end
    ds_read_b128 v[8:11], v1 offset:{SORTED}
    v_add_u32 v2, {OFF_EDG}, v2
    s_waitcnt lgkmcnt(0)
    global_store_dwordx4 v2, v[8:11], s[26:27]
    s_endpgm
    ''')
    a('k1_end:')
    a('s_endpgm')
    return a

def emit_tr(a, first):
    a(f'''
    k1_tr:
    s_load_dwordx2 s[8:9], s[0:1], 0
    s_load_dwordx2 s[14:15], s[0:1], 24
    s_load_dwordx2 s[26:27], s[0:1], 88
    s_sub_u32 s3, s2, {first}
    v_and_b32 v1, 63, v0
    v_bfe_u32 v2, v0, 6, 3                ; chunk
    v_lshrrev_b32 v3, 9, v0
    v_lshl_add_u32 v3, v3, 6, v1
    v_lshl_add_u32 v3, s3, 8, v3
    v_lshlrev_b32 v4, 8, v3
    v_lshl_add_u32 v4, v2, 5, v4
    v_add_u32 v44, 0x8000, v4
    v_lshlrev_b32 v5, 1, v3
    v_lshrrev_b32 v6, 2, v2
    v_and_b32 v7, 3, v2
    v_lshl_add_u32 v6, v6, 4, v7          ; slice 16(w>>2)+(w&3)
    v_mul_u32_u24 v6, {SLB}, v6
    v_lshl_add_u32 v6, v3, 3, v6
    s_mov_b32 s4, 0x05040100
    s_mov_b32 s5, 0x07060302
    ''')
    for r in range(48, 57): a(f'v_mov_b32 v{r}, 0')
    a(f'''
    v_mov_b32 v16, 0
    v_cmp_gt_u32 vcc, {N-128}, v3
    s_waitcnt lgkmcnt(0)
    global_load_dwordx4 v[8:11], v4, s[8:9]
    global_load_dwordx4 v[12:15], v4, s[8:9] offset:16
    global_load_short_d16_hi v16, v5, s[14:15]
    s_and_saveexec_b64 s[30:31], vcc
    s_cbranch_execz k1t_a
    global_load_dwordx4 v[48:51], v44, s[8:9]
    global_load_dwordx4 v[52:55], v44, s[8:9] offset:16
    global_load_short_d16_hi v56, v5, s[14:15] offset:256
    k1t_a:
    s_mov_b64 exec, -1
    v_add_u32 v7, {4*SLB}, v6
    v_add_u32 v17, {8*SLB}, v6
    v_add_u32 v18, {12*SLB}, v6
    s_add_u32 s28, s26, {OFF_G}
    s_addc_u32 s29, s27, 0
    s_waitcnt vmcnt(0)
    ''')
    a.stamp(10)
    for p in range(2):
        X = 8 + 40 * p; D = X + 8; o = 1024 * p; P = 32 + 40 * p; Q = 24 + 40 * p
        for cc in range(4):
            i = cc >> 1; sel = 's5' if cc & 1 else 's4'
            a(f'v_perm_b32 v{P+2*cc}, v{X+i+2}, v{X+i}, {sel}')
            a(f'v_perm_b32 v{P+1+2*cc}, v{X+i+6}, v{X+i+4}, {sel}')
        for r in range(8):
            a(f'''
            v_lshlrev_b32 v20, 16, v{P+r}
            v_and_b32 v21, 0xffff0000, v{P+r}
            v_mul_f32 v20, v20, v{D}
            v_mul_f32 v21, v21, v{D}
            {'v_add_u32 v20, 0x10000, v20' if r % 2 == 0 else ''}
            {'v_and_b32 v20, 0xfffe0000, v20' if r % 2 == 0 else ''}
            v_cvt_pk_bf16_f32 v{Q+r}, v20, v21
            ''')
        for j, ad in enumerate((6, 7, 17, 18)):
            a(f'global_store_dwordx2 v{ad}, v[{Q+2*j}:{Q+2*j+1}], s[28:29] offset:{o} sc1')
        for j, ad in enumerate((6, 7, 17, 18)):
            a(f'global_store_dwordx2 v{ad}, v[{P+2*j}:{P+2*j+1}], s[26:27] offset:{o} sc1')
    a('s_endpgm')

def emit_w(a, endl):
    a(f'''
    k1_w:
    v_cmp_gt_u32 vcc, 512, v0
    s_cbranch_vccz {endl}
    s_load_dwordx8 s[16:23], s[0:1], 32
    s_load_dwordx2 s[24:25], s[0:1], 64
    s_load_dwordx2 s[26:27], s[0:1], 88
    v_lshlrev_b32 v1, 4, v0
    v_bfe_u32 v2, v0, 4, 2                 ; row&3
    v_lshrrev_b32 v3, 6, v0                ; row>>2
    v_lshl_add_u32 v2, v2, 4, v3           ; position
    v_and_b32 v3, 15, v0
    v_mul_u32_u24 v2, {RS}, v2
    v_lshl_add_u32 v2, v3, 4, v2
    v_add_u32 v4, 0x2000, v1
    v_add_u32 v5, 0x4000, v1
    v_add_u32 v6, 0x6000, v1
    s_waitcnt lgkmcnt(0)
    s_cmp_eq_u32 s2, 0
    s_cselect_b64 s[28:29], s[16:17], s[20:21]
    s_cselect_b64 s[30:31], s[18:19], s[22:23]
    global_load_dwordx4 v[8:11], v1, s[28:29]
    global_load_dwordx4 v[12:15], v4, s[28:29]
    global_load_dwordx4 v[16:19], v5, s[28:29]
    global_load_dwordx4 v[20:23], v6, s[28:29]
    global_load_dwordx4 v[24:27], v1, s[30:31]
    global_load_dwordx4 v[28:31], v4, s[30:31]
    global_load_dwordx4 v[32:35], v5, s[30:31]
    global_load_dwordx4 v[36:39], v6, s[30:31]
    ''')
    for u in range(8):
        a(f'''
        s_waitcnt vmcnt({7-u})
        ds_write_b128 v2, v[{8+4*u}:{11+4*u}] offset:{(u>>2)*WB + (64*((u&3)>>1) + 8*(u&1))*RS}
        ''')
    a(f'''
    v_lshrrev_b32 v7, 6, v0
    v_and_b32 v1, 63, v0                   ; lane
    v_readfirstlane_b32 s3, v7
    v_bfe_u32 v4, v0, 4, 2                 ; g
    v_mul_u32_u24 v5, {RS}, v3             ; (l&15)*RS
    v_lshl_add_u32 v6, v4, 4, v5
    v_lshl_add_u32 v7, v4, 3, v5
    s_waitcnt lgkmcnt(0)
    s_barrier
    ''')
    a.stamp(11)
    a(f'''
    s_cmp_eq_u32 s2, 2
    s_cbranch_scc1 k1_wx
    s_cmp_eq_u32 s2, 1
    s_cbranch_scc1 k1_wv
    ''')
    ACC = 64
    a(f'''
    s_mul_i32 s4, s3, {16*RS}
    v_add_u32 v2, s4, v6
    ''')
    for kk in range(4):
        a(f'ds_read_b128 v[{8+4*kk}:{11+4*kk}], v2 offset:{WB + kk*64}')
        a(f'ds_read_b128 v[{24+4*kk}:{27+4*kk}], v2 offset:{kk*64}')
    for et in range(8):
        base = 40 if et % 2 == 0 else 100
        for kk in range(4):
            a(f'ds_read_b128 v[{base+4*kk}:{base+3+4*kk}], v6 offset:{WB + et*16*RS + kk*64}')
        a('s_waitcnt lgkmcnt(0)')
        for kk in range(4):
            c = '0' if (et == 0 and kk == 0) else 'v[96:99]'
            a(f'v_mfma_f32_16x16x32_bf16 v[96:99], v[{base+4*kk}:{base+3+4*kk}], v[{24+4*kk}:{27+4*kk}], {c}')
    a(f'''
    v_add_f32 v96, v96, v97
    v_add_f32 v98, v98, v99
    v_add_f32 v96, v96, v98
    ''')
    xg_reduce(a, 96, 97)
    a(f'''
    v_lshlrev_b32 v97, 2, v3
    s_lshl_b32 s4, s3, 6
    s_add_u32 s4, s4, {RM}
    v_add_u32 v97, s4, v97
    ds_write_b32 v97, v96
    s_branch k1_wmain
    ''')
    a(f'''
    k1_wv:
    s_lshr_b32 s4, s3, 2
    s_lshl_b32 s4, s4, 7
    s_and_b32 s5, s3, 3
    s_lshl_b32 s5, s5, 1
    s_add_u32 s4, s4, s5                   ; (64*(c>>2) + (c&3))*2 bytes
    v_mul_u32_u24 v2, {2*RS}, v4
    v_lshl_add_u32 v2, v3, 3, v2
    v_add_u32 v2, s4, v2
    v_add_u32 v2, {WB}, v2
    ''')
    for kk in range(4):
        for j in range(8):
            r = (40 if j % 2 == 0 else 100) + 4*kk + j//2
            a(f'ds_read_u16 v{r}, v2 offset:{(64*(kk>>1) + 16*(j&3) + 8*(kk&1) + (j>>2))*RS}')
    a('s_waitcnt lgkmcnt(0)')
    for i in range(16):
        a(f'v_lshl_or_b32 v{8+i}, v{100+i}, 16, v{40+i}')
    a('k1_wmain:')
    for rt in range(8):
        base = 40 if rt % 2 == 0 else 100
        for kk in range(4):
            a(f'ds_read_b128 v[{base+4*kk}:{base+3+4*kk}], v6 offset:{rt*16*RS + kk*64}')
        a('s_waitcnt lgkmcnt(0)')
        for kk in range(4):
            d = f'v[{ACC+4*rt}:{ACC+3+4*rt}]'
            c = '0' if kk == 0 else d
            a(f'v_mfma_f32_16x16x32_bf16 {d}, v[{base+4*kk}:{base+3+4*kk}], v[{8+4*kk}:{11+4*kk}], {c}')
    a(f'''
    s_lshl_b32 s4, s3, 12
    s_lshl_b32 s5, s2, 15
    s_add_u32 s4, s4, s5
    s_add_u32 s4, s4, {OFF_W}
    v_lshl_add_u32 v2, v1, 4, s4
    v_mov_b32 v9, 1.0
    s_cmp_eq_u32 s2, 1
    s_cbranch_scc1 k1_wfin
    s_barrier
    v_lshlrev_b32 v8, 4, v4
    v_add_u32 v8, {RM}, v8
    ''')
    for rt in range(8):
        a(f'ds_read_b128 v[{12+4*rt}:{15+4*rt}], v8 offset:{rt*64}')
    a(f'''
    v_mov_b32 v9, {f32hex(SCALE_LOG2E)}
    v_mov_b32 v10, {f32hex(-1.0/128)}
    s_waitcnt lgkmcnt(0)
    ''')
    for i in range(32):
        a(f'v_fmac_f32 v{ACC+i}, v{12+i}, v10')
    a('k1_wfin:')
    def finish(a):
        a(f'v_add_f32 v10, v{ACC}, v{ACC+1}')
        for i in range(2, 32): a(f'v_add_f32 v10, v10, v{ACC+i}')
        xg_reduce(a, 10, 11)
        a(f'v_mul_f32 v10, {f32hex(-1.0/128)}, v10')
        for i in range(32):
            a(f'v_add_f32 v{ACC+i}, v{ACC+i}, v10')
            a(f'v_mul_f32 v{ACC+i}, v{ACC+i}, v9')
        for m in range(4):
            for q in range(4):
                a(f'v_cvt_pk_bf16_f32 v{12+4*m+q}, v{ACC+8*m+2*q}, v{ACC+8*m+2*q+1}')
            a(f'global_store_dwordx4 v2, v[{12+4*m}:{15+4*m}], s[26:27] offset:{m*1024}')
    finish(a)
    a('s_endpgm')
    a(f'''
    k1_wx:
    s_cmp_lt_u32 s3, 4
    s_cbranch_scc1 k1_wx0
    v_and_b32 v8, 255, v0
    v_lshlrev_b32 v8, 7, v8
    v_add_u32 v8, {OFF_FLAG}, v8
    v_mov_b32 v9, 0
    global_store_dword v8, v9, s[26:27]
    s_endpgm
    k1_wx0:
    s_cmp_lg_u32 s3, 0
    s_cbranch_scc1 {endl}
    v_lshlrev_b32 v2, 5, v4
    ''')
    for m in range(4):
        a(f'global_load_dwordx4 v[{8+4*m}:{11+4*m}], v2, s[24:25] offset:{(m>>1)*128 + (m&1)*16}')
    a(f'''
    s_mov_b32 s4, 0x05040100
    s_mov_b32 s5, 0x07060302
    v_mov_b32 v25, 0x3c003c00
    v_and_b32 v24, 7, v0
    v_cmp_eq_u32 s[28:29], 2, v24
    v_cmp_gt_u32 vcc, 2, v24
    v_cmp_eq_u32 s[30:31], 4, v24
    s_or_b64 vcc, vcc, s[30:31]
    v_cndmask_b32 v29, 0, v25, vcc
    v_cmp_lt_u32 vcc, 3, v24               ; e'&4
    v_and_b32 v24, 3, v0
    v_cmp_eq_u32 s[30:31], 3, v24
    v_mov_b32 v26, 0
    v_lshrrev_b32 v30, 2, v3
    v_lshl_add_u32 v30, v24, 4, v30
    v_mul_u32_u24 v30, {RS}, v30
    v_lshl_add_u32 v30, v4, 5, v30
    s_waitcnt vmcnt(0)
    ''')
    for m in range(4):
        D = 8 + 8 * (m >> 1); b = m & 1
        for q in range(4):
            sel = 's5' if q >= 2 else 's4'
            i = D + b + 4 * (q & 1)
            a(f'v_perm_b32 v{ACC+4*m+q}, v{i+2}, v{i}, {sel}')
            a(f'v_cndmask_b32 v{ACC+4*m+q}, v29, v{ACC+4*m+q}, s[28:29]')
    for i in range(16):
        a(f'''
        v_lshlrev_b32 v27, 16, v{8+i}
        v_and_b32 v28, 0xffff0000, v{8+i}
        v_add_f32 v26, v26, v27
        v_add_f32 v26, v26, v28
        v_cndmask_b32 v{8+i}, v25, v{8+i}, vcc
        ''')
    xg_reduce(a, 26, 27)
    a(f'''
    v_lshlrev_b32 v2, 4, v1
    v_add_u32 v2, {OFF_W+W_X1}, v2
    v_mov_b32 v28, {OFF_W+W_S}
    global_store_dword v28, v26, s[26:27]
    s_not_b64 exec, s[30:31]
    ''')
    for m in range(4):
        a(f'global_store_dwordx4 v2, v[{ACC+4*m}:{ACC+3+4*m}], s[26:27] offset:{m*1024}')
    a('s_mov_b64 exec, -1')
    a('s_waitcnt vmcnt(0)')
    for ft in range(8):
        base = 40 if ft % 2 == 0 else 100
        for m in range(4):
            a(f'ds_read_b128 v[{base+4*m}:{base+3+4*m}], v30 offset:{WB + (64*(ft>>2) + 4*(ft&3))*RS + (m>>1)*128 + (m&1)*16}')
        a('s_waitcnt lgkmcnt(0)')
        for m in range(4):
            d = f'v[{ACC+4*ft}:{ACC+3+4*ft}]'
            c = '0' if m == 0 else d
            a(f'v_mfma_f32_16x16x32_bf16 {d}, v[{base+4*m}:{base+3+4*m}], v[{8+4*m}:{11+4*m}], {c}')
    a('s_waitcnt vmcnt(0)')
    for i in range(16):
        x, y = ACC + 2*i, ACC + 2*i + 1
        a(f'''
        v_cvt_pk_bf16_f32 v{8+i}, v{x}, v{y}
        v_lshlrev_b32 v56, 16, v{8+i}
        v_and_b32 v57, 0xffff0000, v{8+i}
        v_sub_f32 v56, v{x}, v56
        v_sub_f32 v57, v{y}, v57
        v_cvt_pk_bf16_f32 v{24+i}, v56, v57
        ''')
    for rt in range(8):
        base = 40 if rt % 2 == 0 else 100
        for m in range(4):
            a(f'ds_read_b64 v[{base+4*m}:{base+1+4*m}], v7 offset:{rt*16*RS + m*64}')
            a(f'ds_read_b64 v[{base+2+4*m}:{base+3+4*m}], v7 offset:{rt*16*RS + m*64 + 32}')
        a('s_waitcnt lgkmcnt(0)')
        for m in range(4):
            d = f'v[{ACC+4*rt}:{ACC+3+4*rt}]'
            c = '0' if m == 0 else d
            a(f'v_mfma_f32_16x16x32_bf16 {d}, v[{base+4*m}:{base+3+4*m}], v[{8+4*m}:{11+4*m}], {c}')
            a(f'v_mfma_f32_16x16x32_bf16 {d}, v[{base+4*m}:{base+3+4*m}], v[{24+4*m}:{27+4*m}], {d}')
    a('v_mov_b32 v9, 1.0')
    a('s_mov_b64 exec, s[30:31]')
    a('s_branch k1_wfin')
```

```python
from asmlib import *
from common import *

SCH = 0; XL = 8192; LB = 16384; XC = 16896; RB = 17408; OC = 17920; WSUM = 17984; PAD = 18048
import k1
K2_LDS = k1.W_LDS
K2_GRID = k1.K1_W + NG + k1.NTR
PAT = 4; EPAT = 2; RSTEP = 21; SLACK = 0

def wave_red(a, op, v):
    for c in ('row_shr:1', 'row_shr:2', 'row_shr:4', 'row_shr:8'):
        a(f'{op}_dpp v{v}, v{v}, v{v} {c} row_mask:0xf bank_mask:0xf')
    a(f'{op}_dpp v{v}, v{v}, v{v} row_bcast:15 row_mask:0xa bank_mask:0xf')
    a(f'{op}_dpp v{v}, v{v}, v{v} row_bcast:31 row_mask:0xc bank_mask:0xf')

def ovf_push(a, ve, tag):
    a(f'''
    v_mov_b32 v40, 0
    v_mov_b32 v41, 1
    ds_read_b128 v[44:47], v40 offset:{WSUM}
    ds_read_b128 v[48:51], v40 offset:{WSUM+16}
    ds_read_b128 v[52:55], v40 offset:{WSUM+32}
    ds_read_b128 v[56:59], v40 offset:{WSUM+48}
    ds_add_rtn_u32 v42, v40, v41 offset:{OC}
    s_waitcnt lgkmcnt(0)
    ''')
    for r in range(44, 60, 2):
        a(f'v_add3_u32 v42, v42, v{r}, v{r+1}')
    a(f'''
    v_lshlrev_b32 v42, 2, v42
    v_add_u32 v42, {OFF_OVF}, v42
    global_store_dword v42, v{ve}, s[4:5]
    ''')

import os
HV = os.environ.get('HV', '')
RST = ''
if 'nors' in HV:
    for k in range(5):
        RST += f'v_add_u32 v44, {HSZ}, v44\nglobal_store_dwordx4 v44, v[36:39], s[4:5] {"" if "rpl" in HV else "sc1"}\n'
def gen_k2():
    a = Asm(); a.name = 'k2'
    a(f'''
    s_cmp_ge_u32 s2, {K2_GRID}
    s_cbranch_scc1 k2_end
    s_cmp_lt_u32 s2, {k1.K1_W}
    s_cbranch_scc1 k1_w
    s_cmp_ge_u32 s2, {k1.K1_W + NG}
    s_cbranch_scc1 k1_tr
    s_sub_u32 s28, s2, {k1.K1_W}
    s_load_dwordx2 s[4:5], s[0:1], 88
    v_lshrrev_b32 v1, 2, v0                 ; chunk c
    v_and_b32 v2, 3, v0                     ; q
    s_lshl_b32 s3, s28, 2
    s_add_u32 s3, s3, {OFF_OFFS}
    v_min_u32 v5, {NCH-1}, v1
    v_lshl_add_u32 v3, v5, 10, s3
    v_mul_u32_u24 v5, {CH*4}, v5
    v_lshl_add_u32 v5, v2, 4, v5
    v_add_u32 v5, {OFF_EDG}, v5             ; edg + c*6400 + q*16
    v_lshlrev_b32 v6, 3, v0
    v_mov_b32 v8, -1
    v_mov_b32 v9, -1
    s_waitcnt lgkmcnt(0)
    global_load_dword v4, v3, s[4:5]
    ds_write_b64 v6, v[8:9] offset:{SCH}
    v_mov_b32 v10, 0
    v_mov_b32 v11, 0
    v_cmp_gt_u32 vcc, {(OC+16-LB)//8}, v0
    s_and_saveexec_b64 s[6:7], vcc
    ds_write_b64 v6, v[10:11] offset:{LB}
    s_mov_b64 exec, -1
    v_cmp_gt_u32 vcc, {NCH}, v1
    v_lshrrev_b32 v7, 6, v0
    v_lshlrev_b32 v7, 2, v7                 ; wave*4
    v_mov_b32 v30, 1
    s_waitcnt vmcnt(0)
    ''')
    a.stamp(1)
    a(f'''
    v_cndmask_b32 v4, 0, v4, vcc
    v_and_b32 v12, 0xffff, v4               ; start
    v_lshrrev_b32 v13, 16, v4               ; end
    v_sub_u32 v13, v13, v12
    v_lshlrev_b32 v14, 2, v2
    v_sub_u32 v13, v13, v14
    v_lshl_add_u32 v5, v12, 2, v5
    global_load_dwordx4 v[16:19], v5, s[4:5]
    v_cmp_lt_i32 vcc, 16, v13
    s_and_saveexec_b64 s[6:7], vcc
    s_cbranch_execz k2_a
    global_load_dwordx4 v[20:23], v5, s[4:5] offset:64
    k2_a:
    s_mov_b64 exec, -1
    v_cmp_eq_u32 vcc, 0, v2
    v_cndmask_b32 v12, 0, v12, vcc
    ''')
    wave_red(a, 'v_add_u32', 12)
    a(f'''
    s_mov_b32 exec_lo, 0
    s_brev_b32 exec_hi, 1
    ds_write_b32 v7, v12 offset:{WSUM}
    s_mov_b64 exec, -1
    s_waitcnt lgkmcnt(0)
    s_barrier
    s_waitcnt vmcnt(0)
    ''')
    a.stamp(2)
    a('''
    k2_loop:
    s_waitcnt vmcnt(0)
    ''')
    E0 = 16; B0 = 24; A0 = 32; O0 = 36
    for k in range(4):
        a(f'''
        v_cmp_lt_i32 s[{10+2*k}:{11+2*k}], {k}, v13
        v_lshlrev_b32 v{B0+k}, v{E0+k}, v30
        v_lshrrev_b32 v{A0+k}, 3, v{E0+k}
        v_and_b32 v{A0+k}, 0x1f8, v{A0+k}
        ''')
    for k in range(4):
        a(f'''
        s_mov_b64 exec, s[{10+2*k}:{11+2*k}]
        ds_or_rtn_b32 v{O0+k}, v{A0+k}, v{B0+k} offset:{LB}
        ''')
    for k in range(4):
        a(f'''
        s_mov_b64 exec, s[{10+2*k}:{11+2*k}]
        v_and_b32 v28, 0xfff, v{E0+k}
        v_lshlrev_b32 v28, 1, v28
        v_lshrrev_b32 v29, 12, v{E0+k}
        v_and_b32 v29, 0x1f8, v29
        {'s_waitcnt lgkmcnt(0)' if k == 0 else ''}
        v_and_b32 v31, v{O0+k}, v{B0+k}
        v_cmp_eq_u32 vcc, 0, v31
        s_andn2_b64 s[{10+2*k}:{11+2*k}], exec, vcc
        s_mov_b64 exec, vcc
        ds_write_b16_d16_hi v28, v{E0+k} offset:{SCH}
        ds_or_b32 v29, v{B0+k} offset:{RB}
        s_mov_b64 exec, s[{10+2*k}:{11+2*k}]
        ds_add_rtn_u32 v{O0+k}, v{A0+k}, v30 offset:{XC}
        ''')
    for k in range(4):
        a(f'''
        s_mov_b64 exec, s[{10+2*k}:{11+2*k}]
        v_and_b32 v28, 0xfc0, v{E0+k}
        {'s_waitcnt lgkmcnt(0)' if k == 0 else ''}
        v_add_lshl_u32 v28, v28, v{O0+k}, 1
        v_cmp_gt_u32 vcc, 64, v{O0+k}
        s_andn2_b64 s[{10+2*k}:{11+2*k}], exec, vcc
        s_mov_b64 exec, vcc
        ds_write_b16_d16_hi v28, v{E0+k} offset:{XL}
        ''')
    a(f'''
    s_or_b64 s[6:7], s[10:11], s[12:13]
    s_or_b64 s[8:9], s[14:15], s[16:17]
    s_or_b64 s[6:7], s[6:7], s[8:9]
    s_cbranch_scc1 k2_slow1
    k2_b:
    s_mov_b64 exec, -1
    v_subrev_u32 v13, 16, v13
    v_cmp_lt_i32 vcc, 0, v13
    s_cbranch_vccz k2_p2
    v_mov_b32 v16, v20
    v_mov_b32 v17, v21
    v_mov_b32 v18, v22
    v_mov_b32 v19, v23
    v_add_u32 v5, 64, v5
    v_cmp_lt_i32 vcc, 16, v13
    s_and_saveexec_b64 s[6:7], vcc
    s_cbranch_execz k2_c
    global_load_dwordx4 v[20:23], v5, s[4:5] offset:64
    k2_c:
    s_mov_b64 exec, -1
    s_branch k2_loop
    k2_slow1:
    ''')
    for k in range(4):
        a(f'''
        s_mov_b64 exec, s[{10+2*k}:{11+2*k}]
        s_cbranch_execz k2_s1_{k}
        ''')
        ovf_push(a, E0+k, f's1{k}')
        a(f'k2_s1_{k}:')
    a('s_branch k2_b')
    a(f'''
    k2_p2:
    v_lshrrev_b32 v44, 5, v0
    v_and_b32 v45, 31, v0
    v_mul_u32_u24 v44, {SLB}, v44
    v_lshl_add_u32 v44, v45, 4, v44
    s_lshl_b32 s3, s28, 9
    s_add_u32 s3, s3, {OFF_G + HSZ}
    v_add_u32 v44, s3, v44
    v_mov_b32 v36, 0
    v_mov_b32 v37, 0
    v_mov_b32 v38, 0
    v_mov_b32 v39, 0
    global_store_dwordx4 v44, v[36:39], s[4:5] sc1
    {RST}
    v_and_b32 v1, 63, v0                    ; lane
    v_lshlrev_b32 v2, 3, v1
    v_lshrrev_b32 v3, 4, v0                 ; node i
    v_and_b32 v4, 15, v0                    ; w
    v_lshlrev_b32 v5, 3, v3
    v_lshlrev_b32 v6, 7, v3
    v_lshl_add_u32 v7, v4, 1, v6
    s_waitcnt lgkmcnt(0)
    ''')
    a.stamp(3)
    a('s_barrier')
    a.stamp(4)
    a(f'''
    ds_read_b32 v8, v2 offset:{LB}
    ds_read_b32 v9, v2 offset:{XC}
    ds_read_u16 v16, v7 offset:{XL}
    ds_read_u16 v17, v7 offset:{XL+32}
    ds_read_u16 v18, v7 offset:{XL+64}
    ds_read_u16 v19, v7 offset:{XL+96}
    ds_read_b64 v[10:11], v5 offset:{LB}
    ds_read_b32 v12, v5 offset:{XC}
    v_lshrrev_b32 v15, 5, v3                ; h
    v_lshlrev_b32 v15, 3, v15               ; h*8
    v_mul_u32_u24 v20, 11, v3
    v_lshl_add_u32 v20, v4, 2, v20
    v_and_b32 v20, 63, v20
    s_waitcnt lgkmcnt(6)
    v_bcnt_u32_b32 v8, v8, v9
    ''')
    for k in range(4):
        a(f'''
        s_waitcnt lgkmcnt({5-k})
        v_and_b32 v21, 31, v{16+k}
        v_lshl_add_u32 v21, v21, 4, v15
        v_lshl_or_b32 v{16+k}, v21, 16, v{16+k}
        ''')
        if k == 0:
            a(f'ds_read_b64 v[24:25], v21 offset:{RB}')
    wave_red(a, 'v_max_u32', 8)
    a(f'''
    v_readlane_b32 s10, v8, 63
    s_add_u32 s10, s10, {3+SLACK}
    s_and_b32 s10, s10, -4
    s_max_u32 s10, s10, 32
    s_min_u32 s10, s10, 64                  ; St
    s_sub_u32 s11, s10, 32
    s_lshl_b64 s[12:13], 1, s11
    s_sub_u32 s12, s12, 1
    s_mul_i32 s14, s10, {RSTEP}
    s_lshr_b32 s14, s14, 6
    s_sub_u32 s15, s14, s10
    v_mul_u32_u24 v20, s10, v20
    v_lshrrev_b32 v20, 6, v20               ; o
    s_waitcnt lgkmcnt(0)
    v_bcnt_u32_b32 v21, v10, 0
    v_sub_u32 v21, s10, v21                 ; capacity
    v_min_u32 v12, 64, v12
    v_min_u32 v13, v21, v12                 ; nx
    v_cmp_lt_u32 vcc, v13, v12
    s_cbranch_vccnz k2_slow2
    k2_d:
    ''')
    a.stamp(5)
    a(f'''
    v_sub_u32 v13, v13, v4
    v_mov_b32 v14, 0                        ; fails
    v_cmp_lt_i32 vcc, 0, v13
    s_and_b64 exec, vcc, vcc
    s_cbranch_execz k2_p3
    k2_round:
    v_bitop3_b32 v26, v10, v24, v24 bitop3:0x03
    v_bitop3_b32 v27, v11, v25, s12 bitop3:0x02
    v_cmp_eq_u64 vcc, 0, v[26:27]
    v_cndmask_b32 v28, 0, {EPAT}, vcc
    v_add_u32 v14, v14, v28
    v_cmp_le_u32 s[16:17], {PAT}, v14       ; force
    v_not_b32 v28, v10
    v_bitop3_b32 v29, v11, v11, s12 bitop3:0x02
    s_and_b64 vcc, vcc, s[16:17]
    v_cndmask_b32 v26, v26, v28, vcc
    v_cndmask_b32 v27, v27, v29, vcc
    v_lshlrev_b64 v[28:29], v20, -1
    v_and_b32 v28, v28, v26
    v_and_b32 v29, v29, v27
    v_cmp_ne_u64 vcc, 0, v[28:29]
    v_cndmask_b32 v26, v26, v28, vcc
    v_cndmask_b32 v27, v27, v29, vcc
    v_ffbl_b32 v28, v26
    v_ffbl_b32 v29, v27
    v_or_b32 v29, 32, v29
    v_min_u32 v28, v28, v29                 ; t or -1
    v_lshlrev_b64 v[32:33], v28, 1
    v_and_b32 v32, v32, v26
    v_and_b32 v33, v33, v27
    v_lshrrev_b32 v22, 16, v16
    v_lshrrev_b32 v23, 16, v17
    ds_or_rtn_b64 v[10:11], v5, v[32:33] offset:{LB}
    ds_or_rtn_b64 v[24:25], v22, v[32:33] offset:{RB}
    ds_read_b64 v[34:35], v23 offset:{RB}
    v_cmp_le_i32 s[18:19], 0, v28           ; has
    v_lshl_add_u32 v29, v28, 1, v6
    v_add_u32 v26, s14, v20
    v_add_u32 v27, s15, v20
    v_min_u32 v20, v26, v27
    v_add_u32 v14, 1, v14
    s_waitcnt lgkmcnt(2)
    v_and_b32 v26, v10, v32
    v_and_or_b32 v26, v11, v33, v26
    v_cmp_eq_u32 s[20:21], 0, v26           ; okl
    v_or_b32 v10, v10, v32
    v_or_b32 v11, v11, v33
    s_waitcnt lgkmcnt(0)
    v_and_b32 v26, v24, v32
    v_and_or_b32 v26, v25, v33, v26
    v_cmp_eq_u32 vcc, 0, v26                ; okr
    s_mov_b64 s[24:25], exec
    s_or_b64 s[22:23], vcc, s[16:17]
    s_and_b64 s[22:23], s[22:23], s[20:21]
    s_and_b64 s[22:23], s[22:23], s[18:19]  ; success
    s_andn2_b64 exec, s[20:21], s[22:23]
    ds_xor_b64 v5, v[32:33] offset:{LB}
    s_andn2_b64 exec, vcc, s[22:23]
    ds_xor_b64 v22, v[32:33] offset:{RB}
    s_mov_b64 exec, s[22:23]
    ds_write_b16 v29, v16 offset:{SCH}
    v_mov_b32 v16, v17
    v_mov_b32 v17, v18
    v_mov_b32 v18, v19
    v_mov_b32 v14, 0
    v_subrev_u32 v13, 16, v13
    v_mov_b32 v24, v34
    v_mov_b32 v25, v35
    s_mov_b64 exec, s[24:25]
    v_cmp_lt_i32 vcc, 0, v13
    s_and_b64 exec, vcc, vcc
    s_cbranch_execnz k2_round
    k2_p3:
    s_mov_b64 exec, -1
    v_and_b32 v8, 31, v1
    v_lshrrev_b32 v9, 5, v1
    v_lshlrev_b32 v8, 4, v8
    v_lshl_add_u32 v8, v9, 3, v8
    v_lshrrev_b32 v10, 6, v0
    v_readfirstlane_b32 s11, v10            ; wave
    s_lshr_b32 s12, s11, 3
    s_lshl_b32 s12, s12, 2
    v_add_u32 v8, s12, v8
    s_and_b32 s12, s11, 7
    s_lshl_b32 s12, s12, 2
    s_waitcnt lgkmcnt(0)
    ''')
    a.stamp(6)
    a('s_barrier')
    a.stamp(7)
    a(f'''
    ds_read_b32 v10, v8 offset:{RB}
    v_lshlrev_b32 v9, 7, v9
    s_lshl_b32 s13, s11, 3
    v_add_u32 v9, s13, v9
    s_waitcnt lgkmcnt(0)
    v_lshrrev_b32 v10, s12, v10
    ''')
    for k in range(4):
        a(f'''
        v_and_b32 v11, {1<<k}, v10
        v_cmp_ne_u32 s[{16+2*k}:{17+2*k}], 0, v11
        ''')
    for k in range(8):
        a(f'''
        s_ff0_i32_b32 s{16+k}, s{16+k}
        s_and_b32 s{16+k}, s{16+k}, 31
        ''')
    padc = (NP - 32) * 0x10001
    a(f'''
    s_pack_ll_b32_b16 s24, s16, s18
    s_pack_ll_b32_b16 s25, s20, s22
    s_pack_ll_b32_b16 s26, s17, s19
    s_pack_ll_b32_b16 s27, s21, s23
    s_add_u32 s24, s24, {padc}
    s_add_u32 s25, s25, {padc}
    s_add_u32 s26, s26, {padc}
    s_add_u32 s27, s27, {padc}
    v_mov_b32 v12, s24
    v_mov_b32 v13, s25
    v_writelane_b32 v12, s26, 32
    v_writelane_b32 v13, s27, 32
    s_mov_b32 exec_lo, 1
    s_mov_b32 exec_hi, 1
    ds_write_b64 v9, v[12:13] offset:{PAD}
    s_mov_b64 exec, -1
    s_waitcnt lgkmcnt(0)
    s_barrier
    s_cmp_ge_u32 s11, 9
    s_cbranch_scc1 k2_end
    s_cmp_eq_u32 s11, 8
    s_cbranch_scc1 k2_meta
    v_lshlrev_b32 v1, 4, v0
    v_and_b32 v2, 7, v0                     ; q
    v_lshrrev_b32 v3, 8, v0                 ; h
    v_lshlrev_b32 v3, 7, v3
    v_lshl_add_u32 v3, v2, 4, v3
    ds_read_b128 v[8:11], v1 offset:{SCH}
    ds_read_b128 v[12:15], v3 offset:{PAD}
    v_lshrrev_b32 v4, 3, v0                 ; node
    v_lshlrev_b32 v4, 4, v4
    v_lshl_add_u32 v4, v2, 10, v4
    s_lshl_b32 s12, s28, 13
    s_add_u32 s12, s12, {OFF_SCHED}
    v_add_u32 v4, s12, v4
    v_lshlrev_b32 v2, 3, v2
    v_cmp_gt_u32 vcc, s10, v2
    s_and_b64 exec, vcc, vcc
    s_waitcnt lgkmcnt(0)
    v_pk_min_u16 v8, v8, v12
    v_pk_min_u16 v9, v9, v13
    v_pk_min_u16 v10, v10, v14
    v_pk_min_u16 v11, v11, v15
    global_store_dwordx4 v4, v[8:11], s[4:5]
    s_endpgm
    k2_meta:
    v_mov_b32 v40, 0
    ds_read_b128 v[44:47], v40 offset:{WSUM}
    ds_read_b128 v[48:51], v40 offset:{WSUM+16}
    ds_read_b128 v[52:55], v40 offset:{WSUM+32}
    ds_read_b128 v[56:59], v40 offset:{WSUM+48}
    ds_read_b32 v42, v40 offset:{OC}
    v_mov_b32 v41, 0
    v_mov_b32 v43, 0
    s_lshl_b32 s12, s28, 4
    s_add_u32 s12, s12, {OFF_META}
    v_mov_b32 v4, s12
    s_waitcnt lgkmcnt(0)
    ''')
    for r in range(44, 60, 2):
        a(f'v_add3_u32 v41, v41, v{r}, v{r+1}')
    a(f'''
    v_mov_b32 v40, s10
    s_mov_b64 exec, 1
    global_store_dwordx4 v4, v[40:43], s[4:5]
    s_endpgm
    k2_slow2:
    ''')
    for k in range(4):
        a(f'''
        v_add_u32 v21, {16*k}, v4
        v_cmp_ge_u32 vcc, v21, v13
        v_cmp_lt_u32 s[16:17], v21, v12
        s_and_b64 exec, vcc, s[16:17]
        s_cbranch_execz k2_s2_{k}
        v_lshlrev_b32 v22, 6, v3
        v_lshl_or_b32 v22, v{16+k}, 16, v22
        ''')
        ovf_push(a, 22, f's2{k}')
        a(f'''
        k2_s2_{k}:
        s_mov_b64 exec, -1
        ''')
    a('s_branch k2_d')
    k1.emit_tr(a, k1.K1_W + NG)
    k1.emit_w(a, 'k2_end')
    a('k2_end:')
    a('s_endpgm')
    return a
```

```python
from asmlib import *
from common import *
import os
CV = os.environ.get('CV', '')

C_GRID = 256
XFO = 65536
SCRB = 69632
SCRW = 768
SA = SCRB + 16 * SCRW
SB = SA + 32768
S3 = SB + 32768
CNT = S3 + 4096
C_LDS = CNT + 64
NT_MAIN = 6144
NT = N // 2

VF, VXF, VW1, VR1, VW2, VR2, VLD, VST, VMK = 1, 2, 3, 4, 5, 6, 7, 8, 9
VE, VO = 20, 21
XD = 10
M0_, M1_, M2_, M3_, M4_, M5_ = 14, 15, 16, 17, 18, 19
TB = 20
UB = 46
ACC = 72
FB = 104
NF = 6
def T(m): return TB + 2 + 6 * m
def AC(i): return ACC + 4 * i
def R4(b): return f'v[{b}:{b+3}]'
USLOT = [0, 4, 6, 10, 12, 16, 18, 22]
def U(c): return UB + USLOT[c]
def WIN(m): return UB + 4 + 6 * m
OMAP = [5, 4, 6, 7, 0, 1, 2, 3]
def O(c): return AC(OMAP[c])

class DS:
    def __init__(self, a): self.a = a; self.n = 0; self.done = 0; self.tag = {}
    def op(self, text, tag=None):
        self.a(text); self.n += 1
        if tag is not None: self.tag[tag] = self.n
    def wait(self, tag):
        i = self.tag[tag]
        if i > self.done:
            k = self.n - i
            assert k <= 15
            self.a(f's_waitcnt lgkmcnt({k})'); self.done = i

def treads(a, v, st):
    for m in range(4):
        a(f'ds_read2st64_b64 {R4(T(m))}, v{v} offset0:{st*2*m} offset1:{st*(2*m+1)}')

def body(a):
    ds = DS(a)
    frs = [('x', m) for m in range(4)] + [('q', i) for i in range(32)] + [('v', i) for i in range(32)]
    st = {'n': 0}
    def fissue():
        i = st['n']
        if i >= len(frs): return
        k, j = frs[i]
        b = FB + 4 * (i % NF)
        if k == 'v' and j == 0:
            a(f'''
            s_cmp_eq_u32 s8, 0
            s_cbranch_scc1 c_nob2
            ''')
            a.stamp(5)
            a('s_barrier')
            a.stamp(6)
            a('c_nob2:')
        if k == 'x': ds.op(f'ds_read_b128 {R4(b)}, v{VXF} offset:{j*1024}', ('f', i))
        else: ds.op(f'ds_read_b128 {R4(b)}, v{VF} offset:{(j + (32 if k == "v" else 0))*1024}', ('f', i))
        st['n'] += 1
    for _ in range(NF - 1): fissue()
    fill = []
    def F(txt):
        for l in txt.strip().split('\n'):
            l = l.strip()
            if l: fill.append(l)
    def drain(n=None):
        k = 0
        while fill and (n is None or k < n):
            x = fill.pop(0)
            if callable(x): x()
            else: a(x); k += 1
    fi = {'n': 0}
    def gm(d, m, first, kind, nfill):
        i = fi['n']; fi['n'] += 1
        b = FB + 4 * (i % NF)
        fissue()
        ds.wait(('f', i))
        c = '0' if first else R4(d)
        if kind == 'A': a(f'v_mfma_f32_16x16x32_bf16 {R4(d)}, {R4(b)}, {R4(T(m))}, {c}')
        else: a(f'v_mfma_f32_16x16x32_bf16 {R4(d)}, {R4(T(m))}, {R4(b)}, {c}')
        drain(nfill)
    S_ = AC(4); RR = AC(5); X1R = AC(6); X2R = AC(7)
    RS = XD
    GR = AC(7)
    a(f's_waitcnt lgkmcnt({NF-1})')
    for m in range(4):
        a(f'v_mfma_f32_16x16x32_bf16 {R4(GR)}, {R4(T(m))}, {R4(T(m))}, {"0" if m == 0 else R4(GR)}')
    for m in range(4):
        if m == 2:
            F(f'''
            v_cndmask_b32 v{M0_}, v{GR}, v{GR+1}, s[20:21]
            v_cndmask_b32 v{M1_}, v{GR+2}, v{GR+3}, s[20:21]
            v_cndmask_b32 v{M0_}, v{M0_}, v{M1_}, s[22:23]
            ''')
        gm(XD, m, m == 0, 'A', 2)
    def prio(p):
        l = a.newlabel('c_pr')
        a(f'''
        s_cmp_lg_u32 s9, 0
        s_cbranch_scc1 {l}
        s_setprio {p}
        {l}:
        ''')
    def qcvt(c):
        w = WIN(c >> 1) + 2 * (c & 1); s = AC(c & 3)
        F(f'v_cvt_pk_bf16_f32 v{w}, v{s}, v{s+1}\nv_cvt_pk_bf16_f32 v{w+1}, v{s+2}, v{s+3}')
    def smf(m):
        a(f'v_mfma_f32_16x16x32_bf16 {R4(S_)}, {R4(T(m))}, {R4(WIN(m))}, {"0" if m == 0 else R4(S_)}')
    for c in range(8):
        if c == 1:
            fill.append(lambda: ds.op(f'ds_write_b32 v{VW1}, v{XD+3}'))
            F(f'''
            v_fma_f32 v{M1_}, -v{XD}, v{XD}, s14
            v_fmac_f32 v{M1_}, s12, v{M0_}
            v_max_f32 v{M1_}, s14, v{M1_}
            v_rsq_f32 v{M1_}, v{M1_}
            ''')
            def wrs():
                a('s_mov_b64 exec, s[24:25]')
                ds.op(f'ds_write_b32 v0, v{M1_} offset:256', 'wrs')
                a('s_mov_b64 exec, -1')
            fill.append(wrs)
        if c == 5 and 'np' not in CV: prio(2)
        if c >= 2: pass
        for m in range(4):
            if m == 2 and c >= 1: qcvt(c - 1)
            gm(AC(c & 3), m, m == 0, 'A', 2)
        if c in (2, 4, 6):
            drain(); smf(c // 2 - 1)
        if c == 5:
            ds.op(f'ds_read_b32 v{RS}, v0 offset:256', 'rs')
            ds.op(f'ds_read_b128 {R4(RR)}, v{VR1} offset:256', 'rr')
            ds.op(f'ds_read_b128 {R4(X1R)}, v{VR1}', 'x1r')
            ds.op(f'ds_read_b128 {R4(X2R)}, v{VR1} offset:64', 'x2r')
    def ucvt(c):
        w = U(c); s = AC(c & 3)
        F(f'v_cvt_pk_bf16_f32 v{w}, v{s}, v{s+1}\nv_cvt_pk_bf16_f32 v{w+1}, v{s+2}, v{s+3}')
    def omf(c):
        m = c >> 1
        A_ = T(m) - 2 if (c & 1) == 0 else T(m) + 2
        B_ = U(c) if (c & 1) == 0 else U(c) - 2
        a(f'v_mfma_f32_16x16x32_bf16 {R4(O(c))}, {R4(A_)}, {R4(B_)}, 0')
    def ssq2(c):
        for r in range(4):
            if c == 0: F(f'v_mul_f32 v{M2_+r}, v{O(c)+r}, v{O(c)+r}')
            else: F(f'v_fmac_f32 v{M2_+r}, v{O(c)+r}, v{O(c)+r}')
    MX, TM = M0_, M1_
    for m in range(4):
        if m == 2: qcvt(7)
        gm(AC(0), m, m == 0, 'B', 2)
    drain(); smf(3)
    for c in range(1, 4):
        if c == 3 and 'np' not in CV: prio(1)
        for m in range(4):
            if m == 2: ucvt(c - 1)
            if c == 1 and m == 2:
                fill.append(lambda: ds.wait('rr'))
                for r in range(4): F(f'v_mul_f32 v{S_+r}, v{S_+r}, v{RR+r}')
                F(f'''
                v_max3_f32 v{MX}, v{S_}, v{S_+1}, v{S_+2}
                v_max_f32 v{MX}, v{MX}, v{S_+3}
                v_mov_b32 v{TM}, v{MX}
                v_permlane16_swap_b32 v{MX}, v{TM}
                v_max_f32 v{MX}, v{MX}, v{TM}
                v_mul_f32 v{MX}, v{MX}, v{RS}
                ''')
                for r in range(4): F(f'v_fma_f32 v{S_+r}, v{S_+r}, v{RS}, -v{MX}')
                for r in range(4): F(f'v_exp_f32 v{S_+r}, v{S_+r}')
                F(f'''
                v_add_f32 v{MX}, v{S_}, v{S_+1}
                v_add_f32 v{TM}, v{S_+2}, v{S_+3}
                v_add_f32 v{MX}, v{MX}, v{TM}
                v_mul_f32 v{S_}, v{S_}, v{RR}
                v_mov_b32 v{TM}, v{MX}
                v_mul_f32 v{S_+1}, v{S_+1}, v{RR+1}
                v_mul_f32 v{S_+2}, v{S_+2}, v{RR+2}
                v_permlane16_swap_b32 v{MX}, v{TM}
                v_add_f32 v{MX}, v{MX}, v{TM}
                v_rcp_f32 v{MX}, v{MX}
                v_mul_f32 v{S_+3}, v{S_+3}, v{RR+3}
                v_mul_f32 v{MX}, v{MX}, v{VMK}
                ''')
                for r in range(4): F(f'v_mul_f32 v{S_+r}, v{S_+r}, v{MX}')
                for sl in range(5):
                    F(f'v_cvt_pk_bf16_f32 v{TB+6*sl}, v{S_}, v{S_+1}\nv_cvt_pk_bf16_f32 v{TB+6*sl+1}, v{S_+2}, v{S_+3}')
                fill.append(lambda: ds.wait('x2r'))
                for r in range(4):
                    F(f'v_fmac_f32 v{XD+1}, v{S_+r}, v{X1R+r}\nv_fmac_f32 v{XD+2}, v{S_+r}, v{X2R+r}')
                F(f'''
                v_permlane16_swap_b32 v{XD+1}, v{XD+2}
                v_add_f32 v{XD+1}, v{XD+1}, v{XD+2}
                ''')
                fill.append(lambda: ds.op(f'ds_write_b32 v{VW2}, v{XD+1}'))
            gm(AC(c & 3), m, m == 0, 'B', 5)
    for c in range(4, 8):
        for m in range(4):
            if m == 2: ucvt(c - 1)
            if m == 0: drain()
            gm(AC(c & 3), m, m == 0, 'B', 3)
        if c == 4:
            omf(0); omf(1)
            ds.op(f'ds_read_b64 v[{XD}:{XD+1}], v{VR2}', 'md')
        if c == 5:
            drain(); omf(2); omf(3); ssq2(0); ssq2(1)
        if c == 6:
            drain(); omf(4); omf(5); ssq2(2); ssq2(3)
    drain(); omf(6)
    if 'np' not in CV: prio(0)
    ssq2(4); drain(4)
    ucvt(7); ssq2(5); drain(2)
    drain(2)
    omf(7)
    drain()
    ssq2(6); ssq2(7); drain()
    q0, q1, q2, q3 = M2_, M3_, M4_, M5_
    dp = 'row_mask:0xf bank_mask:'
    a(f'''
    v_add_f32_dpp v{q0}, v{q0}, v{q0} row_ror:8 {dp}0x3
    v_add_f32_dpp v{q1}, v{q1}, v{q1} row_ror:8 {dp}0x3
    v_add_f32_dpp v{q0}, v{q2}, v{q2} row_ror:8 {dp}0xc
    v_add_f32_dpp v{q1}, v{q3}, v{q3} row_ror:8 {dp}0xc
    v_add_f32_dpp v{q0}, v{q0}, v{q0} row_shl:4 {dp}0x5
    v_add_f32_dpp v{q0}, v{q1}, v{q1} row_shr:4 {dp}0xa
    v_add_f32_dpp v{q0}, v{q0}, v{q0} quad_perm:[1,0,3,2] {dp}0xf
    v_add_f32_dpp v{q0}, v{q0}, v{q0} quad_perm:[2,3,0,1] {dp}0xf
    ''')
    ds.wait('md')
    a(f'''
    v_fma_f32 v{q1}, -v{XD}, s10, v{XD+1}
    v_mul_f32 v{q0}, s12, v{q0}
    v_fma_f32 v{q0}, -v{XD}, v{XD}, v{q0}
    v_max_f32 v{q0}, 0, v{q0}
    v_add_f32 v{q0}, s14, v{q0}
    v_rsq_f32 v{q0}, v{q0}
    v_mul_f32 v{q1}, s13, v{q1}
    v_mul_f32 v{q1}, v{q1}, v{q0}
    v_max_f32_dpp v{q0}, v{q1}, v{q1} row_ror:4 {dp}0xf
    v_max_f32_dpp v{q0}, v{q0}, v{q0} row_ror:8 {dp}0xf
    v_mov_b32 v{q2}, v{q0}
    v_permlane16_swap_b32 v{q0}, v{q2}
    v_max_f32 v{q0}, v{q0}, v{q2}
    v_sub_f32 v{q1}, v{q1}, v{q0}
    v_exp_f32 v{q1}, v{q1}
    v_add_f32_dpp v{q0}, v{q1}, v{q1} row_ror:4 {dp}0xf
    v_add_f32_dpp v{q0}, v{q0}, v{q0} row_ror:8 {dp}0xf
    v_mov_b32 v{q2}, v{q0}
    v_permlane16_swap_b32 v{q0}, v{q2}
    v_add_f32 v{q0}, v{q0}, v{q2}
    v_rcp_f32 v{q0}, v{q0}
    v_mul_f32 v{q1}, v{q1}, v{q0}
    ''')
    Y = [FB + c for c in range(8)]
    for r in range(4):
        for c in range(8):
            op = 'v_mul_f32_dpp' if r == 0 else 'v_fmac_f32_dpp'
            a(f'{op} v{Y[c]}, v{q1}, v{O(c)+r} row_newbcast:{4*r} {dp}0xf')
    for c in range(4): a(f'v_permlane16_swap_b32 v{Y[c]}, v{Y[c+4]}')
    for c in range(4): a(f'v_add_f32 v{Y[c]}, v{Y[c]}, v{Y[c+4]}')
    a(f'''
    v_cvt_pk_bf16_f32 v{q2}, v{Y[0]}, v{Y[1]}
    v_cvt_pk_bf16_f32 v{q3}, v{Y[2]}, v{Y[3]}
    global_store_dwordx2 v{VST}, v[{q2}:{q3}], s[6:7]
    ''')

def spin(a, tag, off, va, vt, n=8):
    a(f'''
    s_mov_b32 s34, 0x100000
    {tag}:
    ds_read_b32 v{vt}, v{va} offset:{off}
    s_waitcnt lgkmcnt(0)
    v_readfirstlane_b32 s35, v{vt}
    s_cmp_ge_u32 s35, {n}
    s_cbranch_scc1 {tag}_go
    s_sleep 1
    s_sub_u32 s34, s34, 1
    s_cmp_lg_u32 s34, 0
    s_cbranch_scc1 {tag}
    {tag}_go:
    ''')

def stage(a, line):
    o = 128 * line
    a(f'''
    global_load_lds_dwordx4 v{VE}, s[16:17] offset:{o}
    global_load_lds_dwordx4 v{VO}, s[16:17] offset:{o+1024}
    global_load_lds_dwordx4 v{VE}, s[18:19] offset:{o+2048}
    global_load_lds_dwordx4 v{VO}, s[18:19] offset:{o+3072}
    ''')

def gen_c():
    a = Asm(); a.name = 'c'
    a(f'''
    s_cmp_ge_u32 s2, {C_GRID}
    s_cbranch_scc1 c_end
    s_load_dwordx2 s[4:5], s[0:1], 88
    s_load_dwordx2 s[6:7], s[0:1], 72
    v_lshrrev_b32 v10, 6, v0
    v_and_b32 v11, 63, v0                    ; lane
    v_readfirstlane_b32 s3, v10              ; wave
    v_lshlrev_b32 v{VF}, 4, v11
    v_and_b32 v12, 15, v11                   ; k / e'
    v_lshrrev_b32 v13, 4, v11                ; g
    v_and_b32 v14, 7, v11                    ; hop
    v_bfe_u32 v15, v11, 3, 1                 ; q
    v_mul_u32_u24 v{VE}, {HSZ}, v13
    v_mul_u32_u24 v16, {SLB}, v15
    v_xor_b32 v17, v14, v13
    v_lshlrev_b32 v17, 4, v17
    v_add3_u32 v{VE}, v{VE}, v16, v17
    v_xor_b32 v{VO}, 64, v{VE}
    v_add_u32 v{VO}, {4*HSZ - 1024}, v{VO}
    s_and_b32 s36, s3, 7                     ; w'
    s_mul_i32 s15, s2, 384
    s_mul_i32 s16, s36, {4*SLB}
    s_add_u32 s16, s16, s15                  ; w'*4*SLB + b*384
    s_lshl_b32 s32, s3, 12
    s_add_u32 s33, s32, {OFF_W}
    v_add_u32 v16, s33, v{VF}
    s_lshl_b32 s37, s36, 12
    s_add_u32 s37, s37, {SA}
    v_mov_b32 v18, {CNT}
    v_mov_b32 v22, 0
    v_mov_b32 v23, 0
    v_mov_b32 v24, 0
    v_mov_b32 v25, 0
    s_cmp_ge_u32 s3, 8
    s_waitcnt lgkmcnt(0)
    s_cbranch_scc1 c_l0
    s_mov_b32 m0, s37
    s_add_u32 s16, s4, s16
    s_addc_u32 s17, s5, 0
    s_add_u32 s18, s16, {2*SLB - 2048}
    s_addc_u32 s19, s17, 0
    ''')
    stage(a, 0)
    a(f'''
    s_cmp_ge_u32 s3, 4
    s_cbranch_scc1 c_nox
    s_lshl_b32 s34, s3, 10
    s_add_u32 s34, s34, {XFO}
    s_mov_b32 m0, s34
    s_add_u32 s34, s34, {OFF_W}
    v_add_u32 v17, s34, v{VF}
    global_load_lds_dwordx4 v17, s[4:5]
    c_nox:
    s_mov_b32 m0, s32
    s_nop 0
    global_load_lds_dwordx4 v16, s[4:5]
    global_load_lds_dwordx4 v16, s[4:5] offset:1024
    global_load_lds_dwordx4 v16, s[4:5] offset:2048
    global_load_lds_dwordx4 v16, s[4:5] offset:3072
    s_barrier
    s_branch c_setup
    c_l0:
    ds_write_b128 v18, v[22:25]
    s_mov_b32 m0, s32
    s_add_u32 s16, s4, s16
    s_addc_u32 s17, s5, 0
    s_add_u32 s18, s16, {2*SLB - 2048}
    s_addc_u32 s19, s17, 0
    s_add_u32 s34, s37, {SB - SA - 128}
    s_waitcnt lgkmcnt(0)
    s_barrier
    global_load_lds_dwordx4 v16, s[4:5]
    global_load_lds_dwordx4 v16, s[4:5] offset:1024
    global_load_lds_dwordx4 v16, s[4:5] offset:2048
    global_load_lds_dwordx4 v16, s[4:5] offset:3072
    s_mov_b32 m0, s34
    ''')
    stage(a, 1)
    a(f'''
    c_setup:
    s_mov_b32 s33, {OFF_W + W_S}
    s_load_dword s10, s[4:5], s33
    s_mul_i32 s15, s2, 24
    s_add_u32 s15, s15, s3
    s_cmp_lt_u32 s3, 8
    s_cselect_b32 s9, {16*512}, 0
    s_cselect_b32 s8, 1, 0
    s_cmp_lg_u32 s3, 8
    s_cbranch_scc1 c_nw8
    s_cmp_ge_u32 s2, {NT - NT_MAIN}
    s_cbranch_scc1 c_nw8
    s_add_u32 s34, s2, {NT_MAIN}
    s_sub_u32 s9, s34, s15
    s_lshl_b32 s9, s9, 9
    c_nw8:
    s_setprio 3
    s_lshr_b32 s35, s3, 3
    s_lshl_b32 s35, s35, 15
    s_add_u32 s35, s35, {SA}
    v_xor_b32 v16, s36, v14
    v_lshlrev_b32 v16, 4, v16
    v_lshl_add_u32 v16, v15, 3, v16
    v_lshl_add_u32 v16, v14, 8, v16
    v_and_b32 v17, 1, v13
    v_lshl_add_u32 v16, v17, 7, v16
    v_lshrrev_b32 v17, 5, v11
    v_lshl_add_u32 v16, v17, 11, v16
    v_add_u32 v{VLD}, s35, v16
    s_mov_b32 s20, 0xaaaaaaaa
    s_mov_b32 s21, 0xaaaaaaaa
    s_mov_b32 s22, 0xcccccccc
    s_mov_b32 s23, 0xcccccccc
    s_mov_b32 s24, 0x00f0000f
    s_mov_b32 s25, 0xf0000f00
    s_mov_b32 s12, {f32hex(1.0/128)}
    s_mov_b32 s13, {f32hex(math.log2(math.e))}
    s_mov_b32 s14, {f32hex(1e-5)}
    s_mul_i32 s32, s3, {SCRW}
    s_add_u32 s32, s32, {SCRB}
    s_add_u32 s33, s32, 512
    v_add_u32 v{VXF}, {XFO}, v{VF}
    v_lshl_add_u32 v{VW1}, v11, 2, s32
    v_lshl_add_u32 v{VR1}, v13, 4, s32
    v_lshl_add_u32 v0, v12, 2, s32
    v_lshrrev_b32 v16, 2, v11
    v_lshl_add_u32 v{VR2}, v16, 3, s33
    v_lshrrev_b32 v16, 5, v11                ; g>>1
    v_xor_b32 v16, v16, v15
    v_cmp_eq_u32 vcc, 0, v16
    v_cndmask_b32 v{VMK}, 0, 1.0, vcc
    v_lshl_add_u32 v16, v16, 7, s33
    v_lshl_add_u32 v16, v12, 3, v16
    v_and_b32 v17, 1, v13
    v_lshl_add_u32 v{VW2}, v17, 2, v16
    s_lshl_b32 s15, s15, 9
    v_lshl_add_u32 v{VST}, v11, 3, s15
    v_and_b32 v16, 1, v11
    v_lshlrev_b32 v16, 4, v16
    v_mov_b32 v17, 0x3f80
    v_lshlrev_b32 v16, v16, v17
    v_lshrrev_b32 v17, 1, v12
    v_lshlrev_b32 v18, 1, v13
    v_cmp_eq_u32 vcc, v17, v18
    v_cndmask_b32 v{UB+2}, 0, v16, vcc
    v_add_u32 v18, 1, v18
    v_cmp_eq_u32 vcc, v17, v18
    v_cndmask_b32 v{UB+3}, 0, v16, vcc
    ''')
    for k in range(1, 4):
        a(f'v_mov_b32 v{UB+2+6*k}, v{UB+2}\nv_mov_b32 v{UB+3+6*k}, v{UB+3}')
    a(f'''
    v_mov_b32 v18, {CNT}
    v_mov_b32 v19, 1
    s_cmp_ge_u32 s3, 8
    s_cbranch_scc1 c_late
    s_mov_b64 exec, 1
    s_waitcnt vmcnt(0) lgkmcnt(0)
    ds_add_u32 v18, v19
    s_mov_b64 exec, -1
    ''')
    a.stamp(1)
    spin(a, 'c_sp0', 0, 18, 17)
    a.stamp(2)
    treads(a, VLD, 8)
    a(f'''
    s_mov_b64 exec, 1
    s_waitcnt lgkmcnt(0)
    ds_add_u32 v18, v19 offset:4
    s_mov_b64 exec, -1
    s_branch c_body
    c_late:
    s_cmp_ge_u32 s3, 12
    s_cbranch_scc1 c_l2
    s_waitcnt vmcnt(0) lgkmcnt(0)
    ''')
    a.stamp(3)
    a('s_barrier')
    a.stamp(6)
    a(f'''
    s_branch c_loop
    c_l2:
    s_sub_u32 s36, s3, 12
    s_lshl_b32 s34, s36, 13
    s_add_u32 s37, s34, {SA - 256}
    s_mov_b32 m0, s37
    s_sub_u32 s32, 4, s36
    s_mul_i32 s32, s32, {4*SLB}
    s_sub_u32 s16, s16, s32
    s_subb_u32 s17, s17, 0
    s_sub_u32 s18, s18, s32
    s_subb_u32 s19, s19, 0
    v_mul_u32_u24 v16, {HSZ}, v14
    v_lshrrev_b32 v17, 3, v11
    v_mul_u32_u24 v17, {SLB}, v17
    s_mul_i32 s32, s36, {8*SLB}
    s_lshl_b32 s33, s2, 4
    s_add_u32 s32, s32, s33
    s_add_u32 s32, s32, {NT_MAIN*16}
    v_add3_u32 v16, v16, v17, s32
    ''')
    a.stamp(1)
    spin(a, 'c_sp1', 4, 18, 17)
    a.stamp(2)
    stage(a, 2)
    a(f'''
    s_add_u32 s37, s37, 4096
    s_mov_b32 m0, s37
    s_add_u32 s16, s16, {4*SLB}
    s_addc_u32 s17, s17, 0
    s_add_u32 s18, s18, {4*SLB}
    s_addc_u32 s19, s19, 0
    s_waitcnt vmcnt(4)
    ''')
    a.stamp(3)
    a('s_barrier')
    a.stamp(6)
    stage(a, 2)
    a(f'''
    s_cmp_ge_u32 s2, {NT - NT_MAIN}
    s_cbranch_scc1 c_ns3
    s_lshl_b32 s34, s36, 10
    s_add_u32 s34, s34, {S3}
    s_mov_b32 m0, s34
    s_nop 0
    global_load_lds_dwordx4 v16, s[4:5]
    c_ns3:
    s_mov_b64 exec, 1
    s_waitcnt vmcnt(0)
    ds_add_u32 v18, v19 offset:8
    s_mov_b64 exec, -1
    ''')
    a.stamp(8)
    a('c_loop:')
    treads(a, VLD, 8)
    a('c_body:')
    body(a)
    a.stamp_if(4, 8, 1)
    a(f'''
    s_cmp_eq_u32 s9, 0
    s_cbranch_scc1 c_end
    v_add_u32 v{VST}, s9, v{VST}
    s_mov_b32 s9, 0
    s_mov_b32 s8, 0
    v_mov_b32 v{M0_}, {CNT}
    ''')
    spin(a, 'c_sp2', 8, M0_, M1_, 4)
    a.stamp(7)
    a(f'''
    s_cmp_lg_u32 s3, 8
    s_cbranch_scc1 c_loop
    v_and_b32 v{M0_}, 0x70, v{VF}            ; hop*16
    v_lshrrev_b32 v{M1_}, 8, v{VF}           ; g
    v_lshl_add_u32 v{M0_}, v{M1_}, 7, v{M0_}
    v_bfe_u32 v{M1_}, v{VF}, 7, 1            ; q
    v_lshl_add_u32 v{M0_}, v{M1_}, 3, v{M0_}
    v_add_u32 v{M0_}, {S3}, v{M0_}
    ''')
    treads(a, M0_, 1)
    a('''
    s_branch c_body
    c_end:
    s_endpgm
    ''')
    return a
```

```python
from asmlib import *
from common import *
import os
HV = os.environ.get('HV', 'swpb')

H_GRID = 256
SCR = SLB
H_LDS = SLB + 16 * 1024
BUF = 32; SA = 64; SB = 96; ACC = 12; AC = 8
PF = 3
NBUF = 4
SPIN = 1 << 14
TMO = 31
GA = 28; GB = 26

def blk_reads(a, S, j):
    b = BUF + 8 * (j % NBUF)
    for t in range(4):
        a(f'v_mad_u32_u16 v{b+2*t}, v{S+2*j+(t>>1)}, 8, 0 op_sel:[{t&1},0,0,0]')
    for t in range(4):
        a(f'ds_read_b64 v[{b+2*t}:{b+2*t+1}], v{b+2*t}')

NE = SE // 4
ACB = 2
def blk_mfma(a, j, ACC):
    b = BUF + 8 * (j % NBUF)
    d = f'v[{ACC}:{ACC+3}]'
    a(f'v_smfmac_f32_16x16x64_bf16 {d}, v[{AC}:{AC+3}], v[{b}:{b+7}], v7')

def early(a, tag, S, ACC, sp):
    a(f"""
    s_cmp_lg_u32 s{sp}, 0
    s_cbranch_scc1 {tag}
    """)
    P = min(PF, NE)
    for j in range(NE - 1, NE - 1 - P, -1): blk_reads(a, S, j)
    for j in range(NE - 1 - P, -1, -1):
        blk_reads(a, S, j)
        a(f's_waitcnt lgkmcnt({4*P})')
        blk_mfma(a, j + P, ACC)
    for j in range(P - 1, -1, -1):
        a(f's_waitcnt lgkmcnt({4*j})')
        blk_mfma(a, j, ACC)
    a(f'{tag}:')

def gather(a, tag, S, sm, vdis, vst, G, first, ACC, sp):
    assert NE <= 8 - PF
    order = [12, 11, 13, 10, 14, 9, 15, 8]
    for nb in order:
        a(f'''
        s_cmp_eq_u32 s{sm}, {4*nb}
        s_cbranch_scc1 {tag}_e{nb}
        ''')
    for nb in [16] + order:
        if nb != 16: a(f'{tag}_e{nb}:')
        for j in range(nb - 1, nb - 1 - PF, -1):
            blk_reads(a, S, j)
        a(f's_branch {tag}_p{nb-1-PF}')
    a(f'{tag}_dr:')
    for j in range(PF - 1, -1, -1):
        a(f's_waitcnt lgkmcnt({4*j})')
        blk_mfma(a, NE + j, ACC)
    a(f's_branch {tag}_dd')
    for j in range(15 - PF, -1, -1):
        a(f'{tag}_p{j}:')
        if j == NE - 1:
            a(f"""
            s_cmp_eq_u32 s{sp}, 0
            s_cbranch_scc1 {tag}_dr
            """)
        blk_reads(a, S, j)
        a(f's_waitcnt lgkmcnt({4*PF})')
        blk_mfma(a, j + PF, ACC)
    for j in range(PF - 1, -1, -1):
        a(f's_waitcnt lgkmcnt({4*j})')
        blk_mfma(a, j, ACC)
    a(f'{tag}_dd:')
    a('s_nop 7')
    a(f'''
    s_cmp_lg_u32 s{sm+2}, 0
    s_cbranch_scc1 {tag}_ovf
    {tag}_fin:
    v_mul_f32 v20, v{ACC}, v{vdis}
    v_mul_f32 v21, v{ACC+1}, v{vdis}
    v_mul_f32 v22, v{ACC+2}, v{vdis}
    v_mul_f32 v23, v{ACC+3}, v{vdis}
    v_cvt_pk_bf16_f32 v24, v20, v21
    v_cvt_pk_bf16_f32 v25, v22, v23
    v_mul_f32 v20, v20, v{vdis}
    v_mul_f32 v22, v22, v{vdis}
    v_mul_f32 v23, v23, v{vdis}
    v_add_u32 v20, s26, v20
    v_mul_f32 v21, v21, v{vdis}
    v_and_b32 v20, 0xfffe0000, v20
    v_cvt_pk_bf16_f32 v{G+1}, v22, v23
    v_cvt_pk_bf16_f32 v{G}, v20, v21
    v_or_b32 v{G}, s8, v{G}
    s_mov_b64 vcc, s[32:33]
    v_cndmask_b32_dpp v21, v25, v{G+1}, vcc quad_perm:[1,0,3,2] row_mask:0xf bank_mask:0xf
    v_cndmask_b32_dpp v20, v24, v{G}, vcc quad_perm:[1,0,3,2] row_mask:0xf bank_mask:0xf
    s_mov_b64 vcc, s[34:35]
    v_cndmask_b32_dpp v23, v{G+1}, v25, vcc quad_perm:[1,0,3,2] row_mask:0xf bank_mask:0xf
    v_cndmask_b32_dpp v22, v{G}, v24, vcc quad_perm:[1,0,3,2] row_mask:0xf bank_mask:0xf
    ''')
    a(f'''
    s_cmp_eq_u32 s24, 6
    s_cbranch_scc1 {tag}_hs
    s_mov_b64 exec, s[32:33]
    global_store_dwordx4 v{vst}, v[20:23], s[6:7]
    ''')
    if first:
        a(f'''
        s_cmp_ge_u32 s12, 9
        s_cbranch_scc1 h_poll
        ''')
    a(f'''
    {tag}_hs:
    s_mov_b64 exec, s[34:35]
    global_store_dwordx4 v{vst}, v[20:23], s[28:29] sc1
    s_mov_b64 exec, -1
    ''')

def overflow(a, tag, sm, ACC):
    a(f'''
    {tag}_ovf:
    s_lshl_b32 s36, s12, 10
    s_add_u32 s36, s36, {SCR}
    v_lshl_add_u32 v20, v1, 4, s36
    v_mov_b32 v24, 0
    v_mov_b32 v25, 0
    v_mov_b32 v26, 0
    v_mov_b32 v27, 0
    ds_write_b128 v20, v[24:27]
    s_lshl_b32 s37, s{sm+1}, 2
    s_add_u32 s37, s37, {OFF_OVF}
    v_lshl_add_u32 v21, v1, 2, s37
    s_mov_b32 s38, s{sm+2}                   ; remaining
    {tag}_ol:
    v_cmp_gt_u32 vcc, s38, v1
    s_and_b64 exec, vcc, vcc
    global_load_dword v22, v21, s[4:5]
    s_waitcnt vmcnt(0)
    v_bfe_u32 v23, v22, 16, 15
    v_lshlrev_b32 v23, 3, v23
    ds_read_b64 v[24:25], v23
    v_bfe_u32 v22, v22, 6, 6
    v_lshl_add_u32 v22, v22, 4, s36
    s_waitcnt lgkmcnt(0)
    v_lshlrev_b32 v26, 16, v24
    v_and_b32 v27, 0xffff0000, v24
    v_lshlrev_b32 v30, 16, v25
    v_and_b32 v31, 0xffff0000, v25
    ds_add_f32 v22, v26
    ds_add_f32 v22, v27 offset:4
    ds_add_f32 v22, v30 offset:8
    ds_add_f32 v22, v31 offset:12
    s_mov_b64 exec, -1
    v_add_u32 v21, 256, v21
    s_waitcnt lgkmcnt(0)
    s_sub_u32 s38, s38, 64
    s_cbranch_scc1 {tag}_od
    s_cmp_lg_u32 s38, 0
    s_cbranch_scc1 {tag}_ol
    {tag}_od:
    ds_read_b128 v[24:27], v20
    s_waitcnt lgkmcnt(0)
    v_add_f32 v{ACC}, v{ACC}, v24
    v_add_f32 v{ACC+1}, v{ACC+1}, v25
    v_add_f32 v{ACC+2}, v{ACC+2}, v26
    v_add_f32 v{ACC+3}, v{ACC+3}, v27
    s_branch {tag}_fin
    ''')

def cnt(a, slot):
    if not Asm.STAMPS: return
    a(f's_cmp_eq_u32 s24, 2')
    a(f's_addc_u32 s{60+2*slot}, s{60+2*slot}, 0')

def gen_h():
    a = Asm(); a.name = 'h'
    a(f'''
    s_cmp_ge_u32 s2, {H_GRID}
    s_cbranch_scc1 h_end
    s_load_dwordx2 s[4:5], s[0:1], 88
    s_load_dwordx2 s[6:7], s[0:1], 24
    v_lshrrev_b32 v2, 6, v0
    v_and_b32 v1, 63, v0
    v_readfirstlane_b32 s12, v2              ; wave
    s_and_b32 s8, s2, 7
    s_lshl_b32 s8, s8, 2
    s_bfe_u32 s3, s2, 0x20003
    s_add_u32 s8, s8, s3                     ; slice
    s_lshr_b32 s9, s2, 5                     ; partition
    s_mul_i32 s10, s9, 49
    s_add_u32 s11, s10, 49
    s_lshr_b32 s10, s10, 1                   ; g0
    s_lshr_b32 s11, s11, 1                   ; g1
    s_add_u32 s13, s10, s12                  ; group A
    s_add_u32 s14, s13, 16                   ; group B
    s_cmp_lt_u32 s14, s11
    s_cselect_b32 s15, 1, 0
    s_cselect_b32 s27, -1, 0
    s_cselect_b32 s14, s14, s13
    s_mov_b32 s26, -1
    s_mul_i32 s25, s8, {SLB}
    s_lshr_b32 s3, s12, 1
    s_and_b32 s36, s12, 1
    s_add_u32 s37, s3, s36
    s_mul_i32 s37, s37, 49
    s_lshr_b32 s37, s37, 1
    s_lshl_b32 s37, s37, 9
    s_mul_i32 s36, s36, 6144
    s_sub_u32 s37, s37, s36
    v_lshl_add_u32 v3, v1, 4, s37
    s_add_u32 s37, s25, {OFF_G + 3072}
    v_add_u32 v2, s37, v3
    s_lshl_b32 s36, s13, 4
    s_lshl_b32 s37, s14, 4
    s_add_u32 s36, s36, {OFF_META}
    s_add_u32 s37, s37, {OFF_META}
    s_mov_b32 s24, 0
    s_and_b32 s39, s12, 3
    v_lshl_add_u32 v20, s13, 6, v1           ; node A
    v_lshl_add_u32 v21, s14, 6, v1           ; node B
    v_min_u32 v22, {N-1}, v20
    v_min_u32 v23, {N-1}, v21
    v_lshlrev_b32 v22, 1, v22
    v_lshlrev_b32 v23, 1, v23
    s_lshl_b32 s40, s13, 13
    s_lshl_b32 s41, s14, 13
    s_add_u32 s40, s40, {OFF_SCHED + 4096}
    s_add_u32 s41, s41, {OFF_SCHED + 4096}
    v_lshl_add_u32 v24, v1, 4, s40
    v_lshl_add_u32 v25, v1, 4, s41
    s_waitcnt lgkmcnt(0)
    s_load_dwordx4 s[16:19], s[4:5], s36
    s_load_dwordx4 s[20:23], s[4:5], s37
    s_add_u32 s28, s4, {HSZ}
    s_addc_u32 s29, s5, 0
    ''')
    for i in range(6):
        a(f'global_load_dwordx4 v[{BUF+4*i}:{BUF+3+4*i}], v2, s[4:5] offset:{i*1024-3072}')
    a(f'''
    s_cmp_lg_u32 s39, 2
    s_cbranch_scc1 hf_n7
    s_mov_b32 exec_hi, 0
    global_load_dwordx4 v[{BUF+24}:{BUF+27}], v2, s[4:5] offset:3072
    s_mov_b32 exec_hi, -1
    hf_n7:
    global_load_ushort v16, v22, s[6:7]
    global_load_ushort v17, v23, s[6:7]
    ''')
    def sload(S, v, q): a(f'global_load_dwordx4 v[{S+4*q}:{S+3+4*q}], v{v}, s[4:5] offset:{q*1024-4096}')
    def scond(S, v, sm, tag):
        a(f"""
        s_cmp_le_u32 s{sm}, 48
        s_cbranch_scc1 {tag}
        """)
        sload(S, v, 6)
        a(f"""
        s_cmp_le_u32 s{sm}, 56
        s_cbranch_scc1 {tag}
        """)
        sload(S, v, 7)
        a(f'{tag}:')
    NPRE = int(os.environ.get('NPRE', '6'))
    W0 = int(os.environ.get('W0', '16'))
    a(f'''
    s_cmp_ge_u32 s12, {W0}
    s_cbranch_scc0 hf_pa
    s_waitcnt vmcnt(0)
    s_branch hf_pb
    hf_pa:
    ''')
    for q in range(NPRE): sload(SA, 24, 5 - q)
    a(f's_waitcnt vmcnt({NPRE})')
    a('hf_pb:')
    for i in range(6):
        a(f'ds_write_b128 v3, v[{BUF+4*i}:{BUF+3+4*i}] offset:{i*1024}')
    a(f'''
    s_cmp_lg_u32 s39, 2
    s_cbranch_scc1 h_w7
    s_mov_b32 exec_hi, 0
    ds_write_b128 v3, v[{BUF+24}:{BUF+27}] offset:6144
    s_mov_b32 exec_hi, -1
    h_w7:
    ''')
    for q in range(NPRE, 6): sload(SA, 24, 5 - q)
    a(f'''
    s_waitcnt lgkmcnt(0)
    s_cmp_ge_u32 s12, {W0}
    s_cbranch_scc1 hf_ca
    ''')
    scond(SA, 24, 16, 'hf_ca')
    a(f'''
    v_bfe_u32 v26, v1, 4, 1                  ; ab&1
    v_bfe_u32 v27, v1, 3, 1                  ; b>>1
    v_cmp_eq_u32 vcc, v26, v27
    v_mov_b32 v29, 0x3f80
    v_cndmask_b32 v29, 0, v29, vcc
    v_and_b32 v28, 4, v1                     ; b&1
    v_cmp_eq_u32 vcc, 0, v28
    v_cndmask_b32 v{AC}, 0, v29, vcc
    v_cndmask_b32 v{AC+1}, 0, v29, vcc
    v_cndmask_b32 v{AC+2}, v29, 0, vcc
    v_cndmask_b32 v{AC+3}, v29, 0, vcc
    v_and_b32 v26, 3, v1                     ; r
    v_add_u32 v27, 1, v26
    v_and_b32 v27, 3, v27
    v_lshl_or_b32 v26, v27, 2, v26
    v_mul_u32_u24 v7, 0x1111, v26
    s_mov_b32 s32, 0x55555555
    s_mov_b32 s33, 0x55555555
    s_not_b64 s[34:35], s[32:33]
    v_mov_b32 v26, {OFF_H}
    v_mov_b32 v27, {OFF_G}
    v_cndmask_b32 v26, v26, v27, s[32:33]
    v_add_u32 v26, s25, v26
    v_and_b32 v27, -2, v20
    v_lshl_add_u32 v18, v27, 3, v26
    v_and_b32 v27, -2, v21
    v_lshl_add_u32 v19, v27, 3, v26
    v_lshlrev_b32 v16, 16, v16
    v_lshlrev_b32 v17, 16, v17
    v_cmp_gt_u32 vcc, {N}, v20
    v_cndmask_b32 v16, 0, v16, vcc
    v_cmp_gt_u32 vcc, {N}, v21
    v_cndmask_b32 v17, 0, v17, vcc
    v_lshlrev_b32 v0, 3, v20
    v_and_b32 v26, 31, v1
    v_lshrrev_b32 v27, 5, v1
    v_lshlrev_b32 v27, 13, v27
    v_lshl_add_u32 v26, v26, 4, v27
    s_lshl_b32 s36, s13, 9
    s_add_u32 s36, s36, s25
    s_add_u32 s36, s36, {OFF_G}
    v_add_u32 v5, s36, v26
    s_mov_b32 s30, {SPIN}
    s_add_u32 s3, s9, s12
    s_and_b32 s3, s3, 7
    s_and_b32 s31, s3, 1
    s_sub_u32 s31, 0, s31
    s_mul_i32 s36, s3, 49
    s_lshr_b32 s36, s36, 1
    s_lshl_b32 s36, s36, 9
    s_add_u32 s37, s25, {OFF_G + 4096}
    s_cmp_lt_u32 s12, 9
    s_cbranch_scc1 h_np
    v_lshl_add_u32 v3, v1, 4, s36
    v_add_u32 v2, s37, v3
    v_add_u32 v19, 8192, v2
    v_and_b32 v17, 7, v1
    s_lshl_b32 s36, s8, 10
    s_add_u32 s36, s36, {OFF_FLAG}
    v_lshl_add_u32 v17, v17, 7, s36
    h_np:
    s_mov_b64 s[6:7], s[28:29]
    s_mov_b64 s[10:11], s[4:5]
    s_mov_b64 exec, s[26:27]
    global_load_dword v31, v5, s[6:7]
    s_mov_b64 exec, -1
    s_mov_b32 s8, 1
    s_mov_b32 s13, 1
    s_mov_b32 s14, 1
    s_xor_b32 s36, s15, 1
    s_or_b32 s23, s23, s36
    v_mov_b32 v{ACC}, 0
    v_mov_b32 v{ACC+1}, 0
    v_mov_b32 v{ACC+2}, 0
    v_mov_b32 v{ACC+3}, 0
    s_mov_b32 s27, 0x10000
    s_mov_b32 s26, 0
    s_setprio 3
    s_cmp_ge_u32 s12, 8
    s_cbranch_scc1 hf_pr
    s_setprio 2
    hf_pr:
    ''')
    a.stamp_if(13, 24, 0)
    a('s_barrier')
    a.stamp_if(1, 24, 0)
    a('''
    s_cmp_eq_u32 s15, 0
    s_cbranch_scc1 hf_nb
    ''')
    for r in range(4): a(f'v_mov_b32 v{ACB+r}, 0')
    scond(SB, 25, 20, 'hf_cb')
    for q in range(6): sload(SB, 25, 5 - q)
    a(f'''
    s_waitcnt vmcnt(6)
    s_branch h_tokd
    hf_nb:
    s_cmp_ge_u32 s12, {W0}
    s_cbranch_scc0 hf_pc
    ''')
    scond(SA, 24, 16, 'hf_cc')
    for q in range(6): sload(SA, 24, 5 - q)
    a(f'''
    hf_pc:
    s_waitcnt vmcnt(0)
    s_branch h_tokd
    h_top:
    s_add_u32 s8, s24, 2
    s_bfe_u32 s8, s8, 0x10001
    s_lshl_b32 s27, s8, 16
    s_xor_b32 s26, s27, 0x10000
    s_setprio {2 if 'sw' in HV else 3}
    s_cmp_ge_u32 s12, 8
    s_cbranch_scc1 h_pr
    s_setprio {3 if 'sw' in HV else 2}
    h_pr:
    v_mov_b32 v{ACC}, 0
    v_mov_b32 v{ACC+1}, 0
    v_mov_b32 v{ACC+2}, 0
    v_mov_b32 v{ACC+3}, 0
    s_waitcnt lgkmcnt(0)
    s_cmp_ge_u32 s12, 9
    s_cbranch_scc1 h_bl
    v_mov_b32 v{ACB}, 0
    v_mov_b32 v{ACB+1}, 0
    v_mov_b32 v{ACB+2}, 0
    v_mov_b32 v{ACB+3}, 0
    s_mov_b32 s13, s19
    s_mov_b32 s14, s23
    s_barrier
    ''')
    a.stamp_if(4, 24, 3)
    early(a, 'h_ea', SA, ACC, 13)
    early(a, 'h_eb', SB, ACB, 14)
    a('h_bl:')
    a.stamp_if(2, 24, 3)
    a('s_barrier')
    a.stamp_if(5, 24, 2)
    a.stamp_if(3, 24, 3)
    a('''
    s_cmp_eq_u32 s24, 6
    s_cbranch_scc1 h_tok
    h_tokd:
    ''')
    gather(a, 'ga', SA, 16, 16, 18, GA, True, ACC, 13)
    a.stamp_if(6, 24, 2)
    a('''
    s_cmp_eq_u32 s15, 0
    s_cbranch_scc1 h_nob
    s_setprio 0
    s_waitcnt vmcnt(2)
    ''')
    gather(a, 'gb', SB, 20, 17, 19, GB, False, ACB, 14)
    a.stamp_if(7, 24, 2)
    a(f'''
    s_cmp_eq_u32 s24, 6
    s_cbranch_scc1 h_end
    s_barrier
    ds_write_b64 v0, v[{GA}:{GA+1}]
    ds_write_b64 v0, v[{GB}:{GB+1}] offset:8192
    s_branch h_next
    h_nob:
    s_cmp_eq_u32 s24, 6
    s_cbranch_scc1 h_last
    s_barrier
    ds_write_b64 v0, v[{GA}:{GA+1}]
    s_branch h_next
    h_poll:
    s_setprio 3
    s_mov_b64 exec, -1
    ''')
    Q = [40 + 2 * j for j in range(5)]
    NW = [50, 52, 54, 56, 20]
    def P(r): return f's[{r}:{r+1}]'
    for j in range(4): a(f's_mov_b64 {P(Q[j])}, -1')
    a(f'''
    s_mov_b32 s{Q[4]}, s31
    s_mov_b32 s{Q[4]+1}, 0
    s_mov_b32 s58, {TMO}
    ''')
    a.stamp_if(8, 24, 2)
    for e, p0 in enumerate((0, 4) if 'sw' in HV else (4, 0)):
        def el():
            for i in range(p0, p0 + 4):
                a(f'global_load_dwordx4 v[{BUF+4*i}:{BUF+3+4*i}], v2, s[6:7] offset:{i*1024-4096} sc1')
        if e == 1:
            a.stamp_if(9, 24, 2)
            if 'pb' not in HV: el()
            a('s_barrier')
            if 'pb' in HV: el()
            a.stamp_if(10, 24, 2)
            for i in range(4 - p0, 8 - p0):
                a(f'ds_write_b128 v3, v[{BUF+4*i}:{BUF+3+4*i}] offset:{i*1024}')
            a(f'ds_write_b64 v0, v[{GA}:{GA+1}]')
            a('s_branch h_pc1')
        a(f'h_pe{e}:')
        cnt(a, 14)
        el()
        b = BUF + 4 * p0
        a(f'''
        h_pc{e}:
        s_waitcnt vmcnt(3)
        v_bitop3_b32 v6, v{b}, v{b+2}, s8 bitop3:0x7e
        s_waitcnt vmcnt(2)
        v_bitop3_b32 v30, v{b+4}, v{b+6}, s8 bitop3:0x7e
        s_waitcnt vmcnt(1)
        v_bitop3_b32 v31, v{b+8}, v{b+10}, s8 bitop3:0x7e
        v_or3_b32 v6, v6, v30, v31
        s_waitcnt vmcnt(0)
        v_bitop3_b32 v30, v{b+12}, v{b+14}, s8 bitop3:0x7e
        v_bitop3_b32 v6, v6, v30, 1 bitop3:0xa8
        v_cmp_ne_u32 vcc, 0, v6
        s_and_b64 exec, vcc, vcc
        s_cbranch_scc0 h_ped{e}
        s_sub_u32 s58, s58, 1
        s_cbranch_scc0 h_pe{e}
        buffer_wbl2 sc1
        s_mov_b32 s58, {TMO}
        s_sub_u32 s30, s30, 1
        s_cbranch_scc0 h_pe{e}
        s_mov_b32 s30, 0
        h_ped{e}:
        s_mov_b64 exec, -1
        ''')
    def lload(j, sc='sc1'): a(f'global_load_dwordx4 v[{SB+4*j}:{SB+3+4*j}], v19, s[6:7] offset:{j*1024-4096} {sc}')
    sc = 'sc1'
    for j in range(4): lload(j, sc)
    a(f'''
    s_and_b64 exec, {P(Q[4])}, {P(Q[4])}
    s_cbranch_scc0 h_pl0
    ''')
    lload(4, sc)
    a(f'''
    h_pl0:
    s_mov_b64 exec, -1
    ''')
    for i in range(p0, p0 + 4):
        a(f'ds_write_b128 v3, v[{BUF+4*i}:{BUF+3+4*i}] offset:{i*1024}')
    a('s_waitcnt lgkmcnt(0)')
    a('s_barrier')
    a.stamp_if(11, 24, 2)
    a('h_ly:')
    cnt(a, 15)
    a('s_waitcnt vmcnt(0)')
    for j in range(5):
        a(f'''
        s_mov_b64 exec, {P(Q[j])}
        v_bitop3_b32 v6, v{SB+4*j}, v{SB+4*j+2}, s8 bitop3:0x7e
        v_and_b32 v6, 1, v6
        v_cmp_ne_u32 {P(Q[j])}, 0, v6
        s_andn2_b64 {P(NW[j])}, exec, {P(Q[j])}
        s_and_b64 exec, {P(Q[j])}, {P(Q[j])}
        s_cbranch_scc0 h_ls{j}
        ''')
        lload(j)
        a(f'h_ls{j}:')
    for j in range(5):
        a(f'''
        s_mov_b64 exec, {P(NW[j])}
        ds_write_b128 v3, v[{SB+4*j}:{SB+3+4*j}] offset:{8192+j*1024}
        ''')
    a(f'''
    s_or_b64 s[36:37], {P(Q[0])}, {P(Q[1])}
    s_or_b64 s[38:39], {P(Q[2])}, {P(Q[3])}
    s_or_b64 s[36:37], s[36:37], {P(Q[4])}
    s_or_b64 s[36:37], s[36:37], s[38:39]
    s_cbranch_scc0 h_lyd
    s_sub_u32 s58, s58, 1
    s_cbranch_scc0 h_ly
    buffer_wbl2 sc1
    s_mov_b32 s58, {TMO}
    s_sub_u32 s30, s30, 1
    s_cbranch_scc0 h_ly
    s_mov_b32 s30, 0
    h_lyd:
    s_mov_b64 exec, s[34:35]
    global_store_dwordx4 v18, v[20:23], s[28:29] sc1
    s_mov_b64 exec, -1
    ''')
    a.stamp_if(12, 24, 2)
    a(f'''
    h_next:
    s_add_u32 s24, s24, 1
    s_add_u32 s28, s28, {HSZ}
    s_addc_u32 s29, s29, 0
    s_mov_b64 s[36:37], s[6:7]
    s_mov_b64 s[6:7], s[10:11]
    s_mov_b64 s[10:11], s[36:37]
    s_branch h_top
    h_tok:
    s_cmp_lg_u32 s12, 15
    s_cbranch_scc1 h_tokd
    v_mov_b32 v6, 1
    s_lshl_b64 exec, 1, s9
    global_store_dword v17, v6, s[4:5] sc1
    s_mov_b64 exec, -1
    s_branch h_tokd
    h_last:
    s_cmp_lg_u32 s12, 15
    s_cbranch_scc1 h_end
    s_mov_b32 s58, {TMO}
    s_mov_b64 exec, 0xff
    h_tp:
    global_load_dword v6, v17, s[4:5] sc1
    s_waitcnt vmcnt(0)
    v_cmp_eq_u32 vcc, 0, v6
    s_and_b64 exec, vcc, vcc
    s_cbranch_scc0 h_end
    s_sub_u32 s58, s58, 1
    s_cbranch_scc0 h_tp
    buffer_wbl2 sc1
    s_mov_b32 s58, {TMO}
    s_sub_u32 s30, s30, 1
    s_cbranch_scc0 h_tp
    s_branch h_end
    ''')
    overflow(a, 'ga', 16, ACC)
    overflow(a, 'gb', 20, ACB)
    a('h_end:')
    a('s_endpgm')
    return a
```

```python
from asmlib import *
from common import *

K1_W = 3
K1_SORT0 = 0
K1_GRID = NCH
K1_LDS = 2048 + CH * 4
W_LDS = 2 * 128 * 272 + 1024
NTR = 49
RS = 272
WB = 128 * RS
RM = 2 * WB

def xg_reduce(a, v, t):
    a(f'''
    v_mov_b32 v{t}, v{v}
    v_permlane16_swap_b32 v{v}, v{t}
    v_add_f32 v{v}, v{v}, v{t}
    v_mov_b32 v{t}, v{v}
    v_permlane32_swap_b32 v{v}, v{t}
    v_add_f32 v{v}, v{v}, v{t}
    ''')

def gen_k1():
    a = Asm(); a.name = 'k1'
    a(f'''
    s_cmp_ge_u32 s2, {K1_GRID}
    s_cbranch_scc1 k1_end
    s_load_dwordx4 s[8:11], s[0:1], 0
    s_load_dwordx2 s[12:13], s[0:1], 16
    s_load_dwordx2 s[26:27], s[0:1], 88
    ''')
    HIST = 0; START = 1024; SORTED = 2048
    a(f'''
    s_sub_u32 s3, s2, {K1_SORT0}
    s_mul_i32 s4, s3, {CH*4}
    v_lshlrev_b32 v1, 4, v0
    v_add_u32 v2, s4, v1
    v_lshlrev_b32 v3, 2, v0
    v_mov_b32 v4, 0
    v_mov_b32 v5, 1
    v_mov_b32 v7, 0x8000
    v_cmp_gt_u32 vcc, {CH//4}, v0
    s_mov_b64 s[28:29], vcc
    v_cmp_gt_u32 vcc, 256, v0
    s_and_saveexec_b64 s[30:31], vcc
    s_cbranch_execz k1s_a
    ds_write_b32 v3, v4 offset:{HIST}
    k1s_a:
    s_mov_b64 exec, s[28:29]
    s_waitcnt lgkmcnt(0)
    s_cbranch_execz k1s_b
    global_load_dwordx4 v[8:11], v2, s[10:11]
    global_load_dwordx4 v[12:15], v2, s[12:13]
    k1s_b:
    s_barrier
    s_cbranch_execz k1s_c
    s_waitcnt vmcnt(0)
    ''')
    a.stamp(1)
    for e in range(4):
        a(f'''
        v_lshrrev_b32 v{16+e}, 4, v{12+e}
        v_and_b32 v{16+e}, 0x3fc, v{16+e}
        ds_add_rtn_u32 v{20+e}, v{16+e}, v5 offset:{HIST}
        v_sub_u32 v24, v{8+e}, v{12+e}
        v_and_b32 v24, 31, v24
        v_lshrrev_b32 v26, 5, v{8+e}
        v_or_b32 v26, 1, v26
        v_mul_u32_u24 v26, 1338, v26
        v_cmp_le_u32 s[14:15], {SE}, v24
        v_cmp_gt_u16 vcc, 0xa740, v26
        v_and_b32 v25, 63, v{12+e}
        v_cndmask_b32 v26, v7, v4, vcc
        v_or_b32 v{8+e}, v{8+e}, v26
        s_or_b64 vcc, vcc, s[14:15]
        v_cndmask_b32 v26, 0, 64, vcc
        v_or_b32 v25, v25, v26
        v_lshl_or_b32 v24, v25, 6, v24
        v_and_b32 v25, 32, v{12+e}
        v_lshl_or_b32 v24, v25, 10, v24
        v_lshl_or_b32 v{8+e}, v{8+e}, 16, v24
        ''')
    a(f'''
    s_waitcnt lgkmcnt(0)
    k1s_c:
    s_mov_b64 exec, -1
    s_barrier
    v_and_b32 v6, 63, v0
    v_lshlrev_b32 v6, 4, v6
    ds_read_b128 v[24:27], v6 offset:{HIST}
    s_waitcnt lgkmcnt(0)
    v_add_u32 v29, v24, v25
    v_add_u32 v30, v29, v26
    v_add_u32 v31, v30, v27
    v_mov_b32 v32, v31
    v_add_u32_dpp v32, v32, v32 row_shr:1 row_mask:0xf bank_mask:0xf bound_ctrl:0
    v_add_u32_dpp v32, v32, v32 row_shr:2 row_mask:0xf bank_mask:0xf bound_ctrl:0
    v_add_u32_dpp v32, v32, v32 row_shr:4 row_mask:0xf bank_mask:0xf bound_ctrl:0
    v_add_u32_dpp v32, v32, v32 row_shr:8 row_mask:0xf bank_mask:0xf bound_ctrl:0
    v_add_u32_dpp v32, v32, v32 row_bcast:15 row_mask:0xa bank_mask:0xf
    v_add_u32_dpp v32, v32, v32 row_bcast:31 row_mask:0xc bank_mask:0xf
    v_sub_u32 v36, v32, v31
    v_add_u32 v37, v36, v24
    v_add_u32 v38, v36, v29
    v_add_u32 v39, v36, v30
    ds_write_b128 v6, v[36:39] offset:{START}
    v_lshl_or_b32 v40, v37, 16, v36
    v_lshl_or_b32 v41, v38, 16, v37
    v_lshl_or_b32 v42, v39, 16, v38
    v_lshl_or_b32 v43, v32, 16, v39
    v_cmp_gt_u32 vcc, 64, v0
    s_and_saveexec_b64 s[30:31], vcc
    s_cbranch_execz k1s_d
    s_lshl_b32 s5, s3, 10
    s_add_u32 s5, s5, {OFF_OFFS}
    v_add_u32 v7, s5, v6
    global_store_dwordx4 v7, v[40:43], s[26:27]
    k1s_d:
    s_mov_b64 exec, s[28:29]
    s_waitcnt lgkmcnt(0)
    s_cbranch_execz k1s_e
    ''')
    for e in range(4):
        a(f'ds_read_b32 v{24+e}, v{16+e} offset:{START}')
    for e in range(4):
        a(f'''
        s_waitcnt lgkmcnt({3-e})
        v_add_lshl_u32 v{24+e}, v{24+e}, v{20+e}, 2
        ''')
    for e in range(4):
        a(f'ds_write_b32 v{24+e}, v{8+e} offset:{SORTED}')
    a(f'''
    s_waitcnt lgkmcnt(0)
    k1s_e:
    s_barrier
    s_cbranch_execz k1_end
    ds_read_b128 v[8:11], v1 offset:{SORTED}
    v_add_u32 v2, {OFF_EDG}, v2
    s_waitcnt lgkmcnt(0)
    global_store_dwordx4 v2, v[8:11], s[26:27]
    s_endpgm
    ''')
    a('k1_end:')
    a('s_endpgm')
    return a

def emit_tr(a, first):
    a(f'''
    k1_tr:
    s_load_dwordx2 s[8:9], s[0:1], 0
    s_load_dwordx2 s[14:15], s[0:1], 24
    s_load_dwordx2 s[26:27], s[0:1], 88
    s_sub_u32 s3, s2, {first}
    v_and_b32 v1, 63, v0
    v_bfe_u32 v2, v0, 6, 3                ; chunk
    v_lshrrev_b32 v3, 9, v0
    v_lshl_add_u32 v3, v3, 6, v1
    v_lshl_add_u32 v3, s3, 8, v3
    v_lshlrev_b32 v4, 8, v3
    v_lshl_add_u32 v4, v2, 5, v4
    v_add_u32 v44, 0x8000, v4
    v_lshlrev_b32 v5, 1, v3
    v_lshrrev_b32 v6, 2, v2
    v_and_b32 v7, 3, v2
    v_lshl_add_u32 v6, v6, 4, v7          ; slice 16(w>>2)+(w&3)
    v_mul_u32_u24 v6, {SLB}, v6
    v_lshl_add_u32 v6, v3, 3, v6
    s_mov_b32 s4, 0x05040100
    s_mov_b32 s5, 0x07060302
    ''')
    for r in range(48, 57): a(f'v_mov_b32 v{r}, 0')
    a(f'''
    v_mov_b32 v16, 0
    v_cmp_gt_u32 vcc, {N-128}, v3
    s_waitcnt lgkmcnt(0)
    global_load_dwordx4 v[8:11], v4, s[8:9]
    global_load_dwordx4 v[12:15], v4, s[8:9] offset:16
    global_load_short_d16_hi v16, v5, s[14:15]
    s_and_saveexec_b64 s[30:31], vcc
    s_cbranch_execz k1t_a
    global_load_dwordx4 v[48:51], v44, s[8:9]
    global_load_dwordx4 v[52:55], v44, s[8:9] offset:16
    global_load_short_d16_hi v56, v5, s[14:15] offset:256
    k1t_a:
    s_mov_b64 exec, -1
    v_add_u32 v7, {4*SLB}, v6
    v_add_u32 v17, {8*SLB}, v6
    v_add_u32 v18, {12*SLB}, v6
    s_add_u32 s28, s26, {OFF_G}
    s_addc_u32 s29, s27, 0
    s_waitcnt vmcnt(0)
    ''')
    a.stamp(10)
    for p in range(2):
        X = 8 + 40 * p; D = X + 8; o = 1024 * p; P = 32 + 40 * p; Q = 24 + 40 * p
        for cc in range(4):
            i = cc >> 1; sel = 's5' if cc & 1 else 's4'
            a(f'v_perm_b32 v{P+2*cc}, v{X+i+2}, v{X+i}, {sel}')
            a(f'v_perm_b32 v{P+1+2*cc}, v{X+i+6}, v{X+i+4}, {sel}')
        for r in range(8):
            a(f'''
            v_lshlrev_b32 v20, 16, v{P+r}
            v_and_b32 v21, 0xffff0000, v{P+r}
            v_mul_f32 v20, v20, v{D}
            v_mul_f32 v21, v21, v{D}
            {'v_add_u32 v20, 0x10000, v20' if r % 2 == 0 else ''}
            {'v_and_b32 v20, 0xfffe0000, v20' if r % 2 == 0 else ''}
            v_cvt_pk_bf16_f32 v{Q+r}, v20, v21
            ''')
        for j, ad in enumerate((6, 7, 17, 18)):
            a(f'global_store_dwordx2 v{ad}, v[{Q+2*j}:{Q+2*j+1}], s[28:29] offset:{o} sc1')
        for j, ad in enumerate((6, 7, 17, 18)):
            a(f'global_store_dwordx2 v{ad}, v[{P+2*j}:{P+2*j+1}], s[26:27] offset:{o} sc1')
    a('s_endpgm')

def emit_w(a, endl):
    a(f'''
    k1_w:
    v_cmp_gt_u32 vcc, 512, v0
    s_cbranch_vccz {endl}
    s_load_dwordx8 s[16:23], s[0:1], 32
    s_load_dwordx2 s[24:25], s[0:1], 64
    s_load_dwordx2 s[26:27], s[0:1], 88
    v_lshlrev_b32 v1, 4, v0
    v_bfe_u32 v2, v0, 4, 2                 ; row&3
    v_lshrrev_b32 v3, 6, v0                ; row>>2
    v_lshl_add_u32 v2, v2, 4, v3           ; position
    v_and_b32 v3, 15, v0
    v_mul_u32_u24 v2, {RS}, v2
    v_lshl_add_u32 v2, v3, 4, v2
    v_add_u32 v4, 0x2000, v1
    v_add_u32 v5, 0x4000, v1
    v_add_u32 v6, 0x6000, v1
    s_waitcnt lgkmcnt(0)
    s_cmp_eq_u32 s2, 0
    s_cselect_b64 s[28:29], s[16:17], s[20:21]
    s_cselect_b64 s[30:31], s[18:19], s[22:23]
    global_load_dwordx4 v[8:11], v1, s[28:29]
    global_load_dwordx4 v[12:15], v4, s[28:29]
    global_load_dwordx4 v[16:19], v5, s[28:29]
    global_load_dwordx4 v[20:23], v6, s[28:29]
    global_load_dwordx4 v[24:27], v1, s[30:31]
    global_load_dwordx4 v[28:31], v4, s[30:31]
    global_load_dwordx4 v[32:35], v5, s[30:31]
    global_load_dwordx4 v[36:39], v6, s[30:31]
    ''')
    for u in range(8):
        a(f'''
        s_waitcnt vmcnt({7-u})
        ds_write_b128 v2, v[{8+4*u}:{11+4*u}] offset:{(u>>2)*WB + (64*((u&3)>>1) + 8*(u&1))*RS}
        ''')
    a(f'''
    v_lshrrev_b32 v7, 6, v0
    v_and_b32 v1, 63, v0                   ; lane
    v_readfirstlane_b32 s3, v7
    v_bfe_u32 v4, v0, 4, 2                 ; g
    v_mul_u32_u24 v5, {RS}, v3             ; (l&15)*RS
    v_lshl_add_u32 v6, v4, 4, v5
    v_lshl_add_u32 v7, v4, 3, v5
    s_waitcnt lgkmcnt(0)
    s_barrier
    ''')
    a.stamp(11)
    a(f'''
    s_cmp_eq_u32 s2, 2
    s_cbranch_scc1 k1_wx
    s_cmp_eq_u32 s2, 1
    s_cbranch_scc1 k1_wv
    ''')
    ACC = 64
    a(f'''
    s_mul_i32 s4, s3, {16*RS}
    v_add_u32 v2, s4, v6
    ''')
    for kk in range(4):
        a(f'ds_read_b128 v[{8+4*kk}:{11+4*kk}], v2 offset:{WB + kk*64}')
        a(f'ds_read_b128 v[{24+4*kk}:{27+4*kk}], v2 offset:{kk*64}')
    for et in range(8):
        base = 40 if et % 2 == 0 else 100
        for kk in range(4):
            a(f'ds_read_b128 v[{base+4*kk}:{base+3+4*kk}], v6 offset:{WB + et*16*RS + kk*64}')
        a('s_waitcnt lgkmcnt(0)')
        for kk in range(4):
            c = '0' if (et == 0 and kk == 0) else 'v[96:99]'
            a(f'v_mfma_f32_16x16x32_bf16 v[96:99], v[{base+4*kk}:{base+3+4*kk}], v[{24+4*kk}:{27+4*kk}], {c}')
    a(f'''
    v_add_f32 v96, v96, v97
    v_add_f32 v98, v98, v99
    v_add_f32 v96, v96, v98
    ''')
    xg_reduce(a, 96, 97)
    a(f'''
    v_lshlrev_b32 v97, 2, v3
    s_lshl_b32 s4, s3, 6
    s_add_u32 s4, s4, {RM}
    v_add_u32 v97, s4, v97
    ds_write_b32 v97, v96
    s_branch k1_wmain
    ''')
    a(f'''
    k1_wv:
    s_lshr_b32 s4, s3, 2
    s_lshl_b32 s4, s4, 7
    s_and_b32 s5, s3, 3
    s_lshl_b32 s5, s5, 1
    s_add_u32 s4, s4, s5                   ; (64*(c>>2) + (c&3))*2 bytes
    v_mul_u32_u24 v2, {2*RS}, v4
    v_lshl_add_u32 v2, v3, 3, v2
    v_add_u32 v2, s4, v2
    v_add_u32 v2, {WB}, v2
    ''')
    for kk in range(4):
        for j in range(8):
            r = (40 if j % 2 == 0 else 100) + 4*kk + j//2
            a(f'ds_read_u16 v{r}, v2 offset:{(64*(kk>>1) + 16*(j&3) + 8*(kk&1) + (j>>2))*RS}')
    a('s_waitcnt lgkmcnt(0)')
    for i in range(16):
        a(f'v_lshl_or_b32 v{8+i}, v{100+i}, 16, v{40+i}')
    a('k1_wmain:')
    for rt in range(8):
        base = 40 if rt % 2 == 0 else 100
        for kk in range(4):
            a(f'ds_read_b128 v[{base+4*kk}:{base+3+4*kk}], v6 offset:{rt*16*RS + kk*64}')
        a('s_waitcnt lgkmcnt(0)')
        for kk in range(4):
            d = f'v[{ACC+4*rt}:{ACC+3+4*rt}]'
            c = '0' if kk == 0 else d
            a(f'v_mfma_f32_16x16x32_bf16 {d}, v[{base+4*kk}:{base+3+4*kk}], v[{8+4*kk}:{11+4*kk}], {c}')
    a(f'''
    s_lshl_b32 s4, s3, 12
    s_lshl_b32 s5, s2, 15
    s_add_u32 s4, s4, s5
    s_add_u32 s4, s4, {OFF_W}
    v_lshl_add_u32 v2, v1, 4, s4
    v_mov_b32 v9, 1.0
    s_cmp_eq_u32 s2, 1
    s_cbranch_scc1 k1_wfin
    s_barrier
    v_lshlrev_b32 v8, 4, v4
    v_add_u32 v8, {RM}, v8
    ''')
    for rt in range(8):
        a(f'ds_read_b128 v[{12+4*rt}:{15+4*rt}], v8 offset:{rt*64}')
    a(f'''
    v_mov_b32 v9, {f32hex(SCALE_LOG2E)}
    v_mov_b32 v10, {f32hex(-1.0/128)}
    s_waitcnt lgkmcnt(0)
    ''')
    for i in range(32):
        a(f'v_fmac_f32 v{ACC+i}, v{12+i}, v10')
    a('k1_wfin:')
    def finish(a):
        a(f'v_add_f32 v10, v{ACC}, v{ACC+1}')
        for i in range(2, 32): a(f'v_add_f32 v10, v10, v{ACC+i}')
        xg_reduce(a, 10, 11)
        a(f'v_mul_f32 v10, {f32hex(-1.0/128)}, v10')
        for i in range(32):
            a(f'v_add_f32 v{ACC+i}, v{ACC+i}, v10')
            a(f'v_mul_f32 v{ACC+i}, v{ACC+i}, v9')
        for m in range(4):
            for q in range(4):
                a(f'v_cvt_pk_bf16_f32 v{12+4*m+q}, v{ACC+8*m+2*q}, v{ACC+8*m+2*q+1}')
            a(f'global_store_dwordx4 v2, v[{12+4*m}:{15+4*m}], s[26:27] offset:{m*1024}')
    finish(a)
    a('s_endpgm')
    a(f'''
    k1_wx:
    s_cmp_lt_u32 s3, 4
    s_cbranch_scc1 k1_wx0
    v_and_b32 v8, 255, v0
    v_lshlrev_b32 v8, 7, v8
    v_add_u32 v8, {OFF_FLAG}, v8
    v_mov_b32 v9, 0
    global_store_dword v8, v9, s[26:27]
    s_endpgm
    k1_wx0:
    s_cmp_lg_u32 s3, 0
    s_cbranch_scc1 {endl}
    v_lshlrev_b32 v2, 5, v4
    ''')
    for m in range(4):
        a(f'global_load_dwordx4 v[{8+4*m}:{11+4*m}], v2, s[24:25] offset:{(m>>1)*128 + (m&1)*16}')
    a(f'''
    s_mov_b32 s4, 0x05040100
    s_mov_b32 s5, 0x07060302
    v_mov_b32 v25, 0x3c003c00
    v_and_b32 v24, 7, v0
    v_cmp_eq_u32 s[28:29], 2, v24
    v_cmp_gt_u32 vcc, 2, v24
    v_cmp_eq_u32 s[30:31], 4, v24
    s_or_b64 vcc, vcc, s[30:31]
    v_cndmask_b32 v29, 0, v25, vcc
    v_cmp_lt_u32 vcc, 3, v24               ; e'&4
    v_and_b32 v24, 3, v0
    v_cmp_eq_u32 s[30:31], 3, v24
    v_mov_b32 v26, 0
    v_lshrrev_b32 v30, 2, v3
    v_lshl_add_u32 v30, v24, 4, v30
    v_mul_u32_u24 v30, {RS}, v30
    v_lshl_add_u32 v30, v4, 5, v30
    s_waitcnt vmcnt(0)
    ''')
    for m in range(4):
        D = 8 + 8 * (m >> 1); b = m & 1
        for q in range(4):
            sel = 's5' if q >= 2 else 's4'
            i = D + b + 4 * (q & 1)
            a(f'v_perm_b32 v{ACC+4*m+q}, v{i+2}, v{i}, {sel}')
            a(f'v_cndmask_b32 v{ACC+4*m+q}, v29, v{ACC+4*m+q}, s[28:29]')
    for i in range(16):
        a(f'''
        v_lshlrev_b32 v27, 16, v{8+i}
        v_and_b32 v28, 0xffff0000, v{8+i}
        v_add_f32 v26, v26, v27
        v_add_f32 v26, v26, v28
        v_cndmask_b32 v{8+i}, v25, v{8+i}, vcc
        ''')
    xg_reduce(a, 26, 27)
    a(f'''
    v_lshlrev_b32 v2, 4, v1
    v_add_u32 v2, {OFF_W+W_X1}, v2
    v_mov_b32 v28, {OFF_W+W_S}
    global_store_dword v28, v26, s[26:27]
    s_not_b64 exec, s[30:31]
    ''')
    for m in range(4):
        a(f'global_store_dwordx4 v2, v[{ACC+4*m}:{ACC+3+4*m}], s[26:27] offset:{m*1024}')
    a('s_mov_b64 exec, -1')
    a('s_waitcnt vmcnt(0)')
    for ft in range(8):
        base = 40 if ft % 2 == 0 else 100
        for m in range(4):
            a(f'ds_read_b128 v[{base+4*m}:{base+3+4*m}], v30 offset:{WB + (64*(ft>>2) + 4*(ft&3))*RS + (m>>1)*128 + (m&1)*16}')
        a('s_waitcnt lgkmcnt(0)')
        for m in range(4):
            d = f'v[{ACC+4*ft}:{ACC+3+4*ft}]'
            c = '0' if m == 0 else d
            a(f'v_mfma_f32_16x16x32_bf16 {d}, v[{base+4*m}:{base+3+4*m}], v[{8+4*m}:{11+4*m}], {c}')
    a('s_waitcnt vmcnt(0)')
    for i in range(16):
        x, y = ACC + 2*i, ACC + 2*i + 1
        a(f'''
        v_cvt_pk_bf16_f32 v{8+i}, v{x}, v{y}
        v_lshlrev_b32 v56, 16, v{8+i}
        v_and_b32 v57, 0xffff0000, v{8+i}
        v_sub_f32 v56, v{x}, v56
        v_sub_f32 v57, v{y}, v57
        v_cvt_pk_bf16_f32 v{24+i}, v56, v57
        ''')
    for rt in range(8):
        base = 40 if rt % 2 == 0 else 100
        for m in range(4):
            a(f'ds_read_b64 v[{base+4*m}:{base+1+4*m}], v7 offset:{rt*16*RS + m*64}')
            a(f'ds_read_b64 v[{base+2+4*m}:{base+3+4*m}], v7 offset:{rt*16*RS + m*64 + 32}')
        a('s_waitcnt lgkmcnt(0)')
        for m in range(4):
            d = f'v[{ACC+4*rt}:{ACC+3+4*rt}]'
            c = '0' if m == 0 else d
            a(f'v_mfma_f32_16x16x32_bf16 {d}, v[{base+4*m}:{base+3+4*m}], v[{8+4*m}:{11+4*m}], {c}')
            a(f'v_mfma_f32_16x16x32_bf16 {d}, v[{base+4*m}:{base+3+4*m}], v[{24+4*m}:{27+4*m}], {d}')
    a('v_mov_b32 v9, 1.0')
    a('s_mov_b64 exec, s[30:31]')
    a('s_branch k1_wfin')
```

```python
from asmlib import *
from common import *

SCH = 0; XL = 8192; LB = 16384; XC = 16896; RB = 17408; OC = 17920; WSUM = 17984; PAD = 18048
import k1
K2_LDS = k1.W_LDS
K2_GRID = k1.K1_W + NG + k1.NTR
TS = int(os.environ.get('TS', '0')); PAT = int(os.environ.get('PAT', '4')); EPAT = int(os.environ.get('EPAT', '4')); RSTEP = int(os.environ.get('RSTEP', '27')); SLACK = int(os.environ.get('SLACK', '0'))

def wave_red(a, op, v):
    for c in ('row_shr:1', 'row_shr:2', 'row_shr:4', 'row_shr:8'):
        a(f'{op}_dpp v{v}, v{v}, v{v} {c} row_mask:0xf bank_mask:0xf')
    a(f'{op}_dpp v{v}, v{v}, v{v} row_bcast:15 row_mask:0xa bank_mask:0xf')
    a(f'{op}_dpp v{v}, v{v}, v{v} row_bcast:31 row_mask:0xc bank_mask:0xf')

def ovf_push(a, ve, tag):
    a(f'''
    v_mov_b32 v40, 0
    v_mov_b32 v41, 1
    ds_read_b128 v[44:47], v40 offset:{WSUM}
    ds_read_b128 v[48:51], v40 offset:{WSUM+16}
    ds_read_b128 v[52:55], v40 offset:{WSUM+32}
    ds_read_b128 v[56:59], v40 offset:{WSUM+48}
    ds_add_rtn_u32 v42, v40, v41 offset:{OC}
    s_waitcnt lgkmcnt(0)
    ''')
    for r in range(44, 60, 2):
        a(f'v_add3_u32 v42, v42, v{r}, v{r+1}')
    a(f'''
    v_lshlrev_b32 v42, 2, v42
    v_add_u32 v42, {OFF_OVF}, v42
    global_store_dword v42, v{ve}, s[4:5]
    ''')

import os
HV = os.environ.get('HV', '')
RST = ''
if 'nors' in HV:
    for k in range(5):
        RST += f'v_add_u32 v44, {HSZ}, v44\nglobal_store_dwordx4 v44, v[36:39], s[4:5] {"" if "rpl" in HV else "sc1"}\n'
def gen_k2():
    a = Asm(); a.name = 'k2'
    a(f'''
    s_cmp_ge_u32 s2, {K2_GRID}
    s_cbranch_scc1 k2_end
    s_cmp_lt_u32 s2, {k1.K1_W}
    s_cbranch_scc1 k1_w
    s_cmp_ge_u32 s2, {k1.K1_W + NG}
    s_cbranch_scc1 k1_tr
    s_sub_u32 s28, s2, {k1.K1_W}
    s_load_dwordx2 s[4:5], s[0:1], 88
    v_lshrrev_b32 v1, 2, v0                 ; chunk c
    v_and_b32 v2, 3, v0                     ; q
    s_lshl_b32 s3, s28, 2
    s_add_u32 s3, s3, {OFF_OFFS}
    v_min_u32 v5, {NCH-1}, v1
    v_lshl_add_u32 v3, v5, 10, s3
    v_mul_u32_u24 v5, {CH*4}, v5
    v_lshl_add_u32 v5, v2, 4, v5
    v_add_u32 v5, {OFF_EDG}, v5             ; edg + c*6400 + q*16
    v_lshlrev_b32 v6, 3, v0
    v_mov_b32 v8, -1
    v_mov_b32 v9, -1
    s_waitcnt lgkmcnt(0)
    global_load_dword v4, v3, s[4:5]
    ds_write_b64 v6, v[8:9] offset:{SCH}
    v_mov_b32 v10, 0
    v_mov_b32 v11, 0
    v_cmp_gt_u32 vcc, {(OC+16-LB)//8}, v0
    s_and_saveexec_b64 s[6:7], vcc
    ds_write_b64 v6, v[10:11] offset:{LB}
    s_mov_b64 exec, -1
    v_cmp_gt_u32 vcc, {NCH}, v1
    v_lshrrev_b32 v7, 6, v0
    v_lshlrev_b32 v7, 2, v7                 ; wave*4
    v_mov_b32 v30, 1
    s_waitcnt vmcnt(0)
    ''')
    a.stamp(1)
    a(f'''
    v_cndmask_b32 v4, 0, v4, vcc
    v_and_b32 v12, 0xffff, v4               ; start
    v_lshrrev_b32 v13, 16, v4               ; end
    v_sub_u32 v13, v13, v12
    v_lshlrev_b32 v14, 2, v2
    v_sub_u32 v13, v13, v14
    v_lshl_add_u32 v5, v12, 2, v5
    global_load_dwordx4 v[16:19], v5, s[4:5]
    v_cmp_lt_i32 vcc, 16, v13
    s_and_saveexec_b64 s[6:7], vcc
    s_cbranch_execz k2_a
    global_load_dwordx4 v[20:23], v5, s[4:5] offset:64
    k2_a:
    s_mov_b64 exec, -1
    v_cmp_eq_u32 vcc, 0, v2
    v_cndmask_b32 v12, 0, v12, vcc
    ''')
    wave_red(a, 'v_add_u32', 12)
    a(f'''
    s_mov_b32 exec_lo, 0
    s_brev_b32 exec_hi, 1
    ds_write_b32 v7, v12 offset:{WSUM}
    s_mov_b64 exec, -1
    s_waitcnt lgkmcnt(0)
    s_barrier
    s_waitcnt vmcnt(0)
    ''')
    a.stamp(2)
    a('''
    k2_loop:
    s_waitcnt vmcnt(0)
    ''')
    E0 = 16; B0 = 24; A0 = 32; O0 = 36
    for k in range(4):
        a(f'''
        v_cmp_lt_i32 s[{10+2*k}:{11+2*k}], {k}, v13
        v_bfe_u32 v{B0+k}, v{E0+k}, 12, 1
        v_lshlrev_b32 v{B0+k}, v{E0+k}, v{B0+k}
        v_lshrrev_b32 v{A0+k}, 3, v{E0+k}
        v_and_b32 v{A0+k}, 0x1f8, v{A0+k}
        ''')
    for k in range(4):
        a(f'''
        s_mov_b64 exec, s[{10+2*k}:{11+2*k}]
        ds_or_rtn_b32 v{O0+k}, v{A0+k}, v{B0+k} offset:{LB}
        ''')
    for k in range(4):
        a(f'''
        s_mov_b64 exec, s[{10+2*k}:{11+2*k}]
        v_and_b32 v28, 0xfff, v{E0+k}
        v_lshlrev_b32 v28, 1, v28
        v_lshrrev_b32 v29, 12, v{E0+k}
        v_and_b32 v29, 0x1f8, v29
        {'s_waitcnt lgkmcnt(0)' if k == 0 else ''}
        v_bfi_b32 v31, v{O0+k}, 0, v{B0+k}
        v_cmp_ne_u32 vcc, 0, v31
        s_andn2_b64 s[{10+2*k}:{11+2*k}], exec, vcc
        s_mov_b64 exec, vcc
        ds_write_b16_d16_hi v28, v{E0+k} offset:{SCH}
        ds_or_b32 v29, v{B0+k} offset:{RB}
        s_mov_b64 exec, s[{10+2*k}:{11+2*k}]
        ds_add_rtn_u32 v{O0+k}, v{A0+k}, v30 offset:{XC}
        ''')
    for k in range(4):
        a(f'''
        s_mov_b64 exec, s[{10+2*k}:{11+2*k}]
        v_and_b32 v28, 0xfc0, v{E0+k}
        {'s_waitcnt lgkmcnt(0)' if k == 0 else ''}
        v_add_lshl_u32 v28, v28, v{O0+k}, 1
        v_cmp_gt_u32 vcc, 64, v{O0+k}
        s_andn2_b64 s[{10+2*k}:{11+2*k}], exec, vcc
        s_mov_b64 exec, vcc
        ds_write_b16_d16_hi v28, v{E0+k} offset:{XL}
        ''')
    a(f'''
    s_or_b64 s[6:7], s[10:11], s[12:13]
    s_or_b64 s[8:9], s[14:15], s[16:17]
    s_or_b64 s[6:7], s[6:7], s[8:9]
    s_cbranch_scc1 k2_slow1
    k2_b:
    s_mov_b64 exec, -1
    v_subrev_u32 v13, 16, v13
    v_cmp_lt_i32 vcc, 0, v13
    s_cbranch_vccz k2_p2
    v_mov_b32 v16, v20
    v_mov_b32 v17, v21
    v_mov_b32 v18, v22
    v_mov_b32 v19, v23
    v_add_u32 v5, 64, v5
    v_cmp_lt_i32 vcc, 16, v13
    s_and_saveexec_b64 s[6:7], vcc
    s_cbranch_execz k2_c
    global_load_dwordx4 v[20:23], v5, s[4:5] offset:64
    k2_c:
    s_mov_b64 exec, -1
    s_branch k2_loop
    k2_slow1:
    ''')
    for k in range(4):
        a(f'''
        s_mov_b64 exec, s[{10+2*k}:{11+2*k}]
        s_cbranch_execz k2_s1_{k}
        ''')
        ovf_push(a, E0+k, f's1{k}')
        a(f'k2_s1_{k}:')
    a('s_branch k2_b')
    a(f'''
    k2_p2:
    v_lshrrev_b32 v44, 5, v0
    v_and_b32 v45, 31, v0
    v_mul_u32_u24 v44, {SLB}, v44
    v_lshl_add_u32 v44, v45, 4, v44
    s_lshl_b32 s3, s28, 9
    s_add_u32 s3, s3, {OFF_G + HSZ}
    v_add_u32 v44, s3, v44
    v_mov_b32 v36, 0
    v_mov_b32 v37, 0
    v_mov_b32 v38, 0
    v_mov_b32 v39, 0
    global_store_dwordx4 v44, v[36:39], s[4:5] sc1
    {RST}
    v_and_b32 v1, 63, v0                    ; lane
    v_lshlrev_b32 v2, 3, v1
    v_lshrrev_b32 v3, 4, v0                 ; node i
    v_and_b32 v4, 15, v0                    ; w
    v_lshlrev_b32 v5, 3, v3
    v_lshlrev_b32 v6, 7, v3
    v_lshl_add_u32 v7, v4, 1, v6
    s_waitcnt lgkmcnt(0)
    ''')
    a.stamp(3)
    a('s_barrier')
    a.stamp(4)
    a(f'''
    ds_read_b32 v8, v2 offset:{LB}
    ds_read_b32 v9, v2 offset:{XC}
    ds_read_u16 v16, v7 offset:{XL}
    ds_read_u16 v17, v7 offset:{XL+32}
    ds_read_u16 v18, v7 offset:{XL+64}
    ds_read_u16 v19, v7 offset:{XL+96}
    ds_read_b64 v[10:11], v5 offset:{LB}
    ds_read_b32 v12, v5 offset:{XC}
    v_lshrrev_b32 v15, 5, v3                ; h
    v_lshlrev_b32 v15, 3, v15               ; h*8
    v_mul_u32_u24 v20, 11, v3
    v_lshl_add_u32 v20, v4, 2, v20
    v_and_b32 v20, 63, v20
    s_waitcnt lgkmcnt(6)
    v_bcnt_u32_b32 v8, v8, v9
    ''')
    for k in range(4):
        a(f'''
        s_waitcnt lgkmcnt({5-k})
        v_and_b32 v21, 31, v{16+k}
        v_lshl_add_u32 v21, v21, 4, v15
        v_lshl_or_b32 v{16+k}, v21, 16, v{16+k}
        ''')
        if k == 0:
            a(f'ds_read_b64 v[24:25], v21 offset:{RB}')
    wave_red(a, 'v_max_u32', 8)
    a(f'''
    v_readlane_b32 s10, v8, 63
    s_add_u32 s10, s10, {3+SLACK}
    s_and_b32 s10, s10, -4
    s_max_u32 s10, s10, 32
    s_min_u32 s10, s10, 64                  ; St
    s_sub_u32 s11, s10, 32
    s_lshl_b64 s[12:13], 1, s11
    s_sub_u32 s12, s12, 1
    s_mul_i32 s14, s10, {RSTEP}
    s_lshr_b32 s14, s14, 6
    s_sub_u32 s15, s14, s10
    v_mul_u32_u24 v20, s10, v20
    v_lshrrev_b32 v20, 6, v20               ; o
    s_waitcnt lgkmcnt(0)
    v_bcnt_u32_b32 v21, v10, 0
    v_sub_u32 v21, s10, v21                 ; capacity
    v_min_u32 v12, 64, v12
    v_min_u32 v13, v21, v12                 ; nx
    v_cmp_lt_u32 vcc, v13, v12
    s_cbranch_vccnz k2_slow2
    k2_d:
    s_mov_b32 s29, {(1 << SE) - 1}
    v_lshrrev_b32 v21, {SE}, v10
    v_bcnt_u32_b32 v21, v21, v13
    s_sub_u32 s30, s10, {SE + TS}
    v_cmp_ge_u32 vcc, s30, v21
    v_cndmask_b32 v42, 0, -1, vcc
    v_or_b32 v43, {15 if SE > 8 else 7}, v42
    ''')
    a.stamp(5)
    a(f'''
    v_sub_u32 v13, v13, v4
    v_mov_b32 v14, 0                        ; fails
    v_cmp_lt_i32 vcc, 0, v13
    s_and_b64 exec, vcc, vcc
    s_cbranch_execz k2_p3
    k2_round:
    v_bfe_i32 v36, v16, 15, 1
    v_not_b32 v28, v10
    v_bitop3_b32 v29, v11, v11, s12 bitop3:0x02
    v_bitop3_b32 v37, v36, v42, s29 bitop3:0x5e
    v_and_b32 v38, v37, v28
    v_bitop3_b32 v39, v36, v42, v29 bitop3:0xa8
    v_cmp_eq_u64 vcc, 0, v[38:39]
    v_bitop3_b32 v40, v20, v36, v43 bitop3:0xe0
    v_cndmask_b32 v28, v38, v28, vcc
    v_cndmask_b32 v29, v39, v29, vcc
    v_cndmask_b32 v40, v40, v20, vcc
    v_bfi_b32 v26, v24, 0, v28
    v_bfi_b32 v27, v25, 0, v29
    v_cmp_eq_u64 vcc, 0, v[26:27]
    v_cndmask_b32 v37, 0, {EPAT}, vcc
    v_add_u32 v14, v14, v37
    v_cmp_le_u32 s[16:17], {PAT}, v14       ; force
    s_and_b64 vcc, vcc, s[16:17]
    v_cndmask_b32 v26, v26, v28, vcc
    v_cndmask_b32 v27, v27, v29, vcc
    v_lshlrev_b64 v[28:29], v40, -1
    v_and_b32 v28, v28, v26
    v_and_b32 v29, v29, v27
    v_cmp_ne_u64 vcc, 0, v[28:29]
    v_cndmask_b32 v26, v26, v28, vcc
    v_cndmask_b32 v27, v27, v29, vcc
    v_ffbl_b32 v28, v26
    v_ffbl_b32 v29, v27
    v_or_b32 v29, 32, v29
    v_min_u32 v28, v28, v29                 ; t or -1
    v_lshlrev_b64 v[32:33], v28, 1
    v_and_b32 v32, v32, v26
    v_and_b32 v33, v33, v27
    v_bfe_u32 v22, v16, 16, 9
    v_bfe_u32 v23, v17, 16, 9
    ds_or_rtn_b64 v[10:11], v5, v[32:33] offset:{LB}
    ds_or_rtn_b64 v[24:25], v22, v[32:33] offset:{RB}
    ds_read_b64 v[34:35], v23 offset:{RB}
    v_cmp_le_i32 s[18:19], 0, v28           ; has
    v_lshl_add_u32 v29, v28, 1, v6
    v_add_u32 v26, s14, v20
    v_add_u32 v27, s15, v20
    v_min_u32 v20, v26, v27
    v_add_u32 v14, 1, v14
    s_waitcnt lgkmcnt(2)
    v_and_b32 v26, v10, v32
    v_and_or_b32 v26, v11, v33, v26
    v_cmp_eq_u32 s[20:21], 0, v26           ; okl
    v_or_b32 v10, v10, v32
    v_or_b32 v11, v11, v33
    s_waitcnt lgkmcnt(0)
    v_and_b32 v26, v24, v32
    v_and_or_b32 v26, v25, v33, v26
    v_cmp_eq_u32 vcc, 0, v26                ; okr
    s_mov_b64 s[24:25], exec
    s_or_b64 s[22:23], vcc, s[16:17]
    s_and_b64 s[22:23], s[22:23], s[20:21]
    s_and_b64 s[22:23], s[22:23], s[18:19]  ; success
    s_andn2_b64 exec, s[20:21], s[22:23]
    ds_xor_b64 v5, v[32:33] offset:{LB}
    s_andn2_b64 exec, vcc, s[22:23]
    ds_xor_b64 v22, v[32:33] offset:{RB}
    s_mov_b64 exec, s[22:23]
    ds_write_b16 v29, v16 offset:{SCH}
    v_mov_b32 v16, v17
    v_mov_b32 v17, v18
    v_mov_b32 v18, v19
    v_mov_b32 v14, 0
    v_subrev_u32 v13, 16, v13
    v_mov_b32 v24, v34
    v_mov_b32 v25, v35
    s_mov_b64 exec, s[24:25]
    v_cmp_lt_i32 vcc, 0, v13
    s_and_b64 exec, vcc, vcc
    s_cbranch_execnz k2_round
    k2_p3:
    s_mov_b64 exec, -1
    v_and_b32 v8, 31, v1
    v_lshrrev_b32 v9, 5, v1
    v_lshlrev_b32 v8, 4, v8
    v_lshl_add_u32 v8, v9, 3, v8
    v_lshrrev_b32 v10, 6, v0
    v_readfirstlane_b32 s11, v10            ; wave
    s_lshr_b32 s12, s11, 3
    s_lshl_b32 s12, s12, 2
    v_add_u32 v8, s12, v8
    s_and_b32 s12, s11, 7
    s_lshl_b32 s12, s12, 2
    s_waitcnt lgkmcnt(0)
    ''')
    a.stamp(6)
    a('s_barrier')
    a.stamp(7)
    a(f'''
    ds_read_b32 v10, v8 offset:{RB}
    v_lshlrev_b32 v9, 7, v9
    s_lshl_b32 s13, s11, 3
    v_add_u32 v9, s13, v9
    s_waitcnt lgkmcnt(0)
    v_lshrrev_b32 v10, s12, v10
    ''')
    for k in range(4):
        a(f'''
        v_and_b32 v11, {1<<k}, v10
        v_cmp_ne_u32 s[{16+2*k}:{17+2*k}], 0, v11
        ''')
    for k in range(8):
        a(f'''
        s_ff0_i32_b32 s{16+k}, s{16+k}
        s_and_b32 s{16+k}, s{16+k}, 31
        ''')
    padc = (NP - 32) * 0x10001
    a(f'''
    s_pack_ll_b32_b16 s24, s16, s18
    s_pack_ll_b32_b16 s25, s20, s22
    s_pack_ll_b32_b16 s26, s17, s19
    s_pack_ll_b32_b16 s27, s21, s23
    s_add_u32 s24, s24, {padc}
    s_add_u32 s25, s25, {padc}
    s_add_u32 s26, s26, {padc}
    s_add_u32 s27, s27, {padc}
    v_mov_b32 v12, s24
    v_mov_b32 v13, s25
    v_writelane_b32 v12, s26, 32
    v_writelane_b32 v13, s27, 32
    s_mov_b32 exec_lo, 1
    s_mov_b32 exec_hi, 1
    ds_write_b64 v9, v[12:13] offset:{PAD}
    s_mov_b64 exec, -1
    s_waitcnt lgkmcnt(0)
    s_barrier
    s_cmp_ge_u32 s11, 9
    s_cbranch_scc1 k2_end
    s_cmp_eq_u32 s11, 8
    s_cbranch_scc1 k2_meta
    v_lshlrev_b32 v1, 4, v0
    v_and_b32 v2, 7, v0                     ; q
    v_lshrrev_b32 v3, 8, v0                 ; h
    v_lshlrev_b32 v3, 7, v3
    v_lshl_add_u32 v3, v2, 4, v3
    ds_read_b128 v[8:11], v1 offset:{SCH}
    ds_read_b128 v[12:15], v3 offset:{PAD}
    v_lshrrev_b32 v4, 3, v0                 ; node
    v_lshlrev_b32 v4, 4, v4
    v_lshl_add_u32 v4, v2, 10, v4
    s_lshl_b32 s12, s28, 13
    s_mov_b32 s13, 0x7fff7fff
    s_add_u32 s12, s12, {OFF_SCHED}
    v_add_u32 v4, s12, v4
    v_lshlrev_b32 v2, 3, v2
    v_cmp_gt_u32 vcc, s10, v2
    s_and_b64 exec, vcc, vcc
    s_waitcnt lgkmcnt(0)
    v_and_b32 v8, s13, v8
    v_and_b32 v9, s13, v9
    v_and_b32 v10, s13, v10
    v_and_b32 v11, s13, v11
    v_pk_min_u16 v8, v8, v12
    v_pk_min_u16 v9, v9, v13
    v_pk_min_u16 v10, v10, v14
    v_pk_min_u16 v11, v11, v15
    global_store_dwordx4 v4, v[8:11], s[4:5]
    s_endpgm
    k2_meta:
    v_mov_b32 v40, 0
    ds_read_b128 v[44:47], v40 offset:{WSUM}
    ds_read_b128 v[48:51], v40 offset:{WSUM+16}
    ds_read_b128 v[52:55], v40 offset:{WSUM+32}
    ds_read_b128 v[56:59], v40 offset:{WSUM+48}
    ds_read_b32 v42, v40 offset:{OC}
    v_lshlrev_b32 v1, 7, v1
    ds_read_b128 v[8:11], v1 offset:{SCH}
    ds_read_b128 v[12:15], v1 offset:{SCH+16}
    v_mov_b32 v41, 0
    v_mov_b32 v43, 0
    s_lshl_b32 s12, s28, 4
    s_add_u32 s12, s12, {OFF_META}
    v_mov_b32 v4, s12
    s_waitcnt lgkmcnt(0)
    ''')
    for r in range(44, 60, 2):
        a(f'v_add3_u32 v41, v41, v{r}, v{r+1}')
    a(f'''
    ''')
    for r in range(8, 8 + SE // 2):
        a(f'''
        v_lshlrev_b32 v16, 1, v{r}
        v_bitop3_b32 v43, v{r}, v16, v43 bitop3:0xba
        ''')
    a(f'''
    v_and_b32 v43, 0x80008000, v43
    v_cmp_ne_u32 vcc, 0, v43
    s_or_b32 s12, vcc_lo, vcc_hi
    v_mov_b32 v43, s12
    v_mov_b32 v40, s10
    s_mov_b64 exec, 1
    global_store_dwordx4 v4, v[40:43], s[4:5]
    s_endpgm
    k2_slow2:
    ''')
    for k in range(4):
        a(f'''
        v_add_u32 v21, {16*k}, v4
        v_cmp_ge_u32 vcc, v21, v13
        v_cmp_lt_u32 s[16:17], v21, v12
        s_and_b64 exec, vcc, s[16:17]
        s_cbranch_execz k2_s2_{k}
        v_lshlrev_b32 v22, 6, v3
        v_lshl_or_b32 v22, v{16+k}, 16, v22
        ''')
        ovf_push(a, 22, f's2{k}')
        a(f'''
        k2_s2_{k}:
        s_mov_b64 exec, -1
        ''')
    a('s_branch k2_d')
    k1.emit_tr(a, k1.K1_W + NG)
    k1.emit_w(a, 'k2_end')
    a('k2_end:')
    a('s_endpgm')
    return a
```

```python
from asmlib import *
from common import *
import os
HV = os.environ.get('HV', 'swpbfpepfu')

H_GRID = 256
SCR = SLB
H_LDS = SLB + 16 * 1024
BUF = 32; SA = 64; SB = 96; ACC = 12; AC = 8
PF = 3
NBUF = 4
SPIN = 1 << 14
TMO = 31
GA = 28; GB = 26

def blk_reads(a, S, j, bi=None):
    b = BUF + 8 * ((j if bi is None else bi) % NBUF)
    for t in range(4):
        a(f'v_mad_u32_u16 v{b+2*t}, v{S+2*j+(t>>1)}, 8, 0 op_sel:[{t&1},0,0,0]')
    for t in range(4):
        a(f'ds_read_b64 v[{b+2*t}:{b+2*t+1}], v{b+2*t}')

NE = SE // 4
ACB = 2
def blk_mfma(a, j, ACC):
    b = BUF + 8 * (j % NBUF)
    d = f'v[{ACC}:{ACC+3}]'
    a(f'v_smfmac_f32_16x16x64_bf16 {d}, v[{AC}:{AC+3}], v[{b}:{b+7}], v7')

def early(a, tag, S, ACC, sp):
    a(f"""
    s_cmp_lg_u32 s{sp}, 0
    s_cbranch_scc1 {tag}
    """)
    P = min(PF, NE)
    for j in range(NE - 1, NE - 1 - P, -1): blk_reads(a, S, j)
    for j in range(NE - 1 - P, -1, -1):
        blk_reads(a, S, j)
        a(f's_waitcnt lgkmcnt({4*P})')
        blk_mfma(a, j + P, ACC)
    for j in range(P - 1, -1, -1):
        a(f's_waitcnt lgkmcnt({4*j})')
        blk_mfma(a, j, ACC)
    a(f'{tag}:')

def gather(a, tag, S, sm, vdis, vst, G, first, ACC, sp):
    assert NE <= 8 - PF
    order = [12, 11, 13, 10, 14, 9, 15, 8]
    for nb in order:
        a(f'''
        s_cmp_eq_u32 s{sm}, {4*nb}
        s_cbranch_scc1 {tag}_e{nb}
        ''')
    for nb in [16] + order:
        if nb != 16: a(f'{tag}_e{nb}:')
        for j in range(nb - 1, nb - 1 - PF, -1):
            blk_reads(a, S, j)
        a(f's_branch {tag}_p{nb-1-PF}')
    a(f'{tag}_dr:')
    for j in range(PF - 1, -1, -1):
        a(f's_waitcnt lgkmcnt({4*j})')
        blk_mfma(a, NE + j, ACC)
    a(f's_branch {tag}_dd')
    for j in range(15 - PF, -1, -1):
        a(f'{tag}_p{j}:')
        if j == NE - 1:
            a(f"""
            s_cmp_eq_u32 s{sp}, 0
            s_cbranch_scc1 {tag}_dr
            """)
        blk_reads(a, S, j)
        a(f's_waitcnt lgkmcnt({4*PF})')
        blk_mfma(a, j + PF, ACC)
    for j in range(PF - 1, -1, -1):
        a(f's_waitcnt lgkmcnt({4*j})')
        blk_mfma(a, j, ACC)
    a(f'{tag}_dd:')
    a('s_nop 7')
    a(f'''
    s_cmp_lg_u32 s{sm+2}, 0
    s_cbranch_scc1 {tag}_ovf
    {tag}_fin:
    v_mul_f32 v20, v{ACC}, v{vdis}
    v_mul_f32 v21, v{ACC+1}, v{vdis}
    v_mul_f32 v22, v{ACC+2}, v{vdis}
    v_mul_f32 v23, v{ACC+3}, v{vdis}
    v_cvt_pk_bf16_f32 v24, v20, v21
    v_cvt_pk_bf16_f32 v25, v22, v23
    v_mul_f32 v20, v20, v{vdis}
    v_mul_f32 v22, v22, v{vdis}
    v_mul_f32 v23, v23, v{vdis}
    v_add_u32 v20, s26, v20
    v_mul_f32 v21, v21, v{vdis}
    v_and_b32 v20, 0xfffe0000, v20
    v_cvt_pk_bf16_f32 v{G+1}, v22, v23
    v_cvt_pk_bf16_f32 v{G}, v20, v21
    v_or_b32 v{G}, s8, v{G}
    s_mov_b64 vcc, s[32:33]
    v_cndmask_b32_dpp v21, v25, v{G+1}, vcc quad_perm:[1,0,3,2] row_mask:0xf bank_mask:0xf
    v_cndmask_b32_dpp v20, v24, v{G}, vcc quad_perm:[1,0,3,2] row_mask:0xf bank_mask:0xf
    s_mov_b64 vcc, s[34:35]
    v_cndmask_b32_dpp v23, v{G+1}, v25, vcc quad_perm:[1,0,3,2] row_mask:0xf bank_mask:0xf
    v_cndmask_b32_dpp v22, v{G}, v24, vcc quad_perm:[1,0,3,2] row_mask:0xf bank_mask:0xf
    ''')
    a(f'''
    s_cmp_eq_u32 s24, 6
    s_cbranch_scc1 {tag}_hs
    s_mov_b64 exec, s[32:33]
    global_store_dwordx4 v{vst}, v[20:23], s[6:7]
    ''')
    if first:
        a(f'''
        s_cmp_ge_u32 s12, 9
        s_cbranch_scc1 h_poll
        ''')
    a(f'''
    {tag}_hs:
    s_mov_b64 exec, s[34:35]
    global_store_dwordx4 v{vst}, v[20:23], s[28:29] sc1
    s_mov_b64 exec, -1
    ''')

def overflow(a, tag, sm, ACC):
    a(f'''
    {tag}_ovf:
    s_lshl_b32 s36, s12, 10
    s_add_u32 s36, s36, {SCR}
    v_lshl_add_u32 v20, v1, 4, s36
    v_mov_b32 v24, 0
    v_mov_b32 v25, 0
    v_mov_b32 v26, 0
    v_mov_b32 v27, 0
    ds_write_b128 v20, v[24:27]
    s_lshl_b32 s37, s{sm+1}, 2
    s_add_u32 s37, s37, {OFF_OVF}
    v_lshl_add_u32 v21, v1, 2, s37
    s_mov_b32 s38, s{sm+2}                   ; remaining
    {tag}_ol:
    v_cmp_gt_u32 vcc, s38, v1
    s_and_b64 exec, vcc, vcc
    global_load_dword v22, v21, s[4:5]
    s_waitcnt vmcnt(0)
    v_bfe_u32 v23, v22, 16, 15
    v_lshlrev_b32 v23, 3, v23
    ds_read_b64 v[24:25], v23
    v_bfe_u32 v22, v22, 6, 6
    v_lshl_add_u32 v22, v22, 4, s36
    s_waitcnt lgkmcnt(0)
    v_lshlrev_b32 v26, 16, v24
    v_and_b32 v27, 0xffff0000, v24
    v_lshlrev_b32 v30, 16, v25
    v_and_b32 v31, 0xffff0000, v25
    ds_add_f32 v22, v26
    ds_add_f32 v22, v27 offset:4
    ds_add_f32 v22, v30 offset:8
    ds_add_f32 v22, v31 offset:12
    s_mov_b64 exec, -1
    v_add_u32 v21, 256, v21
    s_waitcnt lgkmcnt(0)
    s_sub_u32 s38, s38, 64
    s_cbranch_scc1 {tag}_od
    s_cmp_lg_u32 s38, 0
    s_cbranch_scc1 {tag}_ol
    {tag}_od:
    ds_read_b128 v[24:27], v20
    s_waitcnt lgkmcnt(0)
    v_add_f32 v{ACC}, v{ACC}, v24
    v_add_f32 v{ACC+1}, v{ACC+1}, v25
    v_add_f32 v{ACC+2}, v{ACC+2}, v26
    v_add_f32 v{ACC+3}, v{ACC+3}, v27
    s_branch {tag}_fin
    ''')

def cnt(a, slot):
    if not Asm.STAMPS: return
    a(f's_cmp_eq_u32 s24, 2')
    a(f's_addc_u32 s{60+2*slot}, s{60+2*slot}, 0')

def gen_h():
    a = Asm(); a.name = 'h'
    a(f'''
    s_cmp_ge_u32 s2, {H_GRID}
    s_cbranch_scc1 h_end
    s_load_dwordx2 s[4:5], s[0:1], 88
    s_load_dwordx2 s[6:7], s[0:1], 24
    v_lshrrev_b32 v2, 6, v0
    v_and_b32 v1, 63, v0
    v_readfirstlane_b32 s12, v2              ; wave
    s_and_b32 s8, s2, 7
    s_lshl_b32 s8, s8, 2
    s_bfe_u32 s3, s2, 0x20003
    s_add_u32 s8, s8, s3                     ; slice
    s_lshr_b32 s9, s2, 5                     ; partition
    s_mul_i32 s10, s9, 49
    s_add_u32 s11, s10, 49
    s_lshr_b32 s10, s10, 1                   ; g0
    s_lshr_b32 s11, s11, 1                   ; g1
    s_add_u32 s13, s10, s12                  ; group A
    s_add_u32 s14, s13, 16                   ; group B
    s_cmp_lt_u32 s14, s11
    s_cselect_b32 s15, 1, 0
    s_cselect_b32 s27, -1, 0
    s_cselect_b32 s14, s14, s13
    s_mov_b32 s26, -1
    s_mul_i32 s25, s8, {SLB}
    s_lshr_b32 s3, s12, 1
    s_and_b32 s36, s12, 1
    s_add_u32 s37, s3, s36
    s_mul_i32 s37, s37, 49
    s_lshr_b32 s37, s37, 1
    s_lshl_b32 s37, s37, 9
    s_mul_i32 s36, s36, 6144
    s_sub_u32 s37, s37, s36
    v_lshl_add_u32 v3, v1, 4, s37
    s_add_u32 s37, s25, {OFF_G + 3072}
    v_add_u32 v2, s37, v3
    s_lshl_b32 s36, s13, 4
    s_lshl_b32 s37, s14, 4
    s_add_u32 s36, s36, {OFF_META}
    s_add_u32 s37, s37, {OFF_META}
    s_mov_b32 s24, 0
    s_and_b32 s39, s12, 3
    v_lshl_add_u32 v20, s13, 6, v1           ; node A
    v_lshl_add_u32 v21, s14, 6, v1           ; node B
    v_min_u32 v22, {N-1}, v20
    v_min_u32 v23, {N-1}, v21
    v_lshlrev_b32 v22, 1, v22
    v_lshlrev_b32 v23, 1, v23
    s_lshl_b32 s40, s13, 13
    s_lshl_b32 s41, s14, 13
    s_add_u32 s40, s40, {OFF_SCHED + 4096}
    s_add_u32 s41, s41, {OFF_SCHED + 4096}
    v_lshl_add_u32 v24, v1, 4, s40
    v_lshl_add_u32 v25, v1, 4, s41
    s_waitcnt lgkmcnt(0)
    s_load_dwordx4 s[16:19], s[4:5], s36
    s_load_dwordx4 s[20:23], s[4:5], s37
    s_add_u32 s28, s4, {HSZ}
    s_addc_u32 s29, s5, 0
    ''')
    for i in range(6):
        a(f'global_load_dwordx4 v[{BUF+4*i}:{BUF+3+4*i}], v2, s[4:5] offset:{i*1024-3072}')
    a(f'''
    s_cmp_lg_u32 s39, 2
    s_cbranch_scc1 hf_n7
    s_mov_b32 exec_hi, 0
    global_load_dwordx4 v[{BUF+24}:{BUF+27}], v2, s[4:5] offset:3072
    s_mov_b32 exec_hi, -1
    hf_n7:
    global_load_ushort v16, v22, s[6:7]
    global_load_ushort v17, v23, s[6:7]
    ''')
    def sload(S, v, q): a(f'global_load_dwordx4 v[{S+4*q}:{S+3+4*q}], v{v}, s[4:5] offset:{q*1024-4096}')
    def scond(S, v, sm, tag):
        a(f"""
        s_cmp_le_u32 s{sm}, 48
        s_cbranch_scc1 {tag}
        """)
        sload(S, v, 6)
        a(f"""
        s_cmp_le_u32 s{sm}, 56
        s_cbranch_scc1 {tag}
        """)
        sload(S, v, 7)
        a(f'{tag}:')
    NPRE = int(os.environ.get('NPRE', '6'))
    W0 = int(os.environ.get('W0', '16'))
    a(f'''
    s_cmp_ge_u32 s12, {W0}
    s_cbranch_scc0 hf_pa
    s_waitcnt vmcnt(0)
    s_branch hf_pb
    hf_pa:
    ''')
    for q in range(NPRE): sload(SA, 24, 5 - q)
    a(f's_waitcnt vmcnt({NPRE})')
    a('hf_pb:')
    for i in range(6):
        a(f'ds_write_b128 v3, v[{BUF+4*i}:{BUF+3+4*i}] offset:{i*1024}')
    a(f'''
    s_cmp_lg_u32 s39, 2
    s_cbranch_scc1 h_w7
    s_mov_b32 exec_hi, 0
    ds_write_b128 v3, v[{BUF+24}:{BUF+27}] offset:6144
    s_mov_b32 exec_hi, -1
    h_w7:
    ''')
    for q in range(NPRE, 6): sload(SA, 24, 5 - q)
    a(f'''
    s_waitcnt lgkmcnt(0)
    s_cmp_ge_u32 s12, {W0}
    s_cbranch_scc1 hf_ca
    ''')
    scond(SA, 24, 16, 'hf_ca')
    a(f'''
    ; sparse MFMA selector A + index
    v_bfe_u32 v26, v1, 4, 1                  ; ab&1
    v_bfe_u32 v27, v1, 3, 1                  ; b>>1
    v_cmp_eq_u32 vcc, v26, v27
    v_mov_b32 v29, 0x3f80
    v_cndmask_b32 v29, 0, v29, vcc
    v_and_b32 v28, 4, v1                     ; b&1
    v_cmp_eq_u32 vcc, 0, v28
    v_cndmask_b32 v{AC}, 0, v29, vcc
    v_cndmask_b32 v{AC+1}, 0, v29, vcc
    v_cndmask_b32 v{AC+2}, v29, 0, vcc
    v_cndmask_b32 v{AC+3}, v29, 0, vcc
    v_and_b32 v26, 3, v1                     ; r
    v_add_u32 v27, 1, v26
    v_and_b32 v27, 3, v27
    v_lshl_or_b32 v26, v27, 2, v26
    v_mul_u32_u24 v7, 0x1111, v26
    s_mov_b32 s32, 0x55555555
    s_mov_b32 s33, 0x55555555
    s_not_b64 s[34:35], s[32:33]
    v_mov_b32 v26, {OFF_H}
    v_mov_b32 v27, {OFF_G}
    v_cndmask_b32 v26, v26, v27, s[32:33]
    v_add_u32 v26, s25, v26
    v_and_b32 v27, -2, v20
    v_lshl_add_u32 v18, v27, 3, v26
    v_and_b32 v27, -2, v21
    v_lshl_add_u32 v19, v27, 3, v26
    v_lshlrev_b32 v16, 16, v16
    v_lshlrev_b32 v17, 16, v17
    v_cmp_gt_u32 vcc, {N}, v20
    v_cndmask_b32 v16, 0, v16, vcc
    v_cmp_gt_u32 vcc, {N}, v21
    v_cndmask_b32 v17, 0, v17, vcc
    v_lshlrev_b32 v0, 3, v20
    v_and_b32 v26, 31, v1
    v_lshrrev_b32 v27, 5, v1
    v_lshlrev_b32 v27, 13, v27
    v_lshl_add_u32 v26, v26, 4, v27
    s_lshl_b32 s36, s13, 9
    s_add_u32 s36, s36, s25
    s_add_u32 s36, s36, {OFF_G}
    v_add_u32 v5, s36, v26
    s_mov_b32 s30, {SPIN}
    ; poller addresses
    s_add_u32 s3, s9, s12
    s_and_b32 s3, s3, 7
    s_and_b32 s31, s3, 1
    s_sub_u32 s31, 0, s31
    s_mul_i32 s36, s3, 49
    s_lshr_b32 s36, s36, 1
    s_lshl_b32 s36, s36, 9
    s_add_u32 s37, s25, {OFF_G + 4096}
    s_cmp_lt_u32 s12, 9
    s_cbranch_scc1 h_np
    v_lshl_add_u32 v3, v1, 4, s36
    v_add_u32 v2, s37, v3
    v_add_u32 v19, 8192, v2
    v_and_b32 v17, 7, v1
    s_lshl_b32 s36, s8, 10
    s_add_u32 s36, s36, {OFF_FLAG}
    v_lshl_add_u32 v17, v17, 7, s36
    h_np:
    s_mov_b64 s[6:7], s[28:29]
    s_mov_b64 s[10:11], s[4:5]
    s_mov_b64 exec, s[26:27]
    global_load_dword v31, v5, s[6:7]
    s_mov_b64 exec, -1
    s_mov_b32 s8, 1
    s_mov_b32 s13, 1
    s_mov_b32 s14, 1
    s_xor_b32 s36, s15, 1
    s_or_b32 s23, s23, s36
    v_mov_b32 v{ACC}, 0
    v_mov_b32 v{ACC+1}, 0
    v_mov_b32 v{ACC+2}, 0
    v_mov_b32 v{ACC+3}, 0
    s_mov_b32 s27, 0x10000
    s_mov_b32 s26, 0
    s_setprio 3
    s_cmp_ge_u32 s12, 8
    s_cbranch_scc1 hf_pr
    s_setprio 2
    hf_pr:
    ''')
    a.stamp_if(13, 24, 0)
    a('s_barrier')
    a.stamp_if(1, 24, 0)
    a('''
    s_cmp_eq_u32 s15, 0
    s_cbranch_scc1 hf_nb
    ''')
    for r in range(4): a(f'v_mov_b32 v{ACB+r}, 0')
    scond(SB, 25, 20, 'hf_cb')
    for q in range(6): sload(SB, 25, 5 - q)
    a(f'''
    s_waitcnt vmcnt(6)
    s_branch h_tokd
    hf_nb:
    s_cmp_ge_u32 s12, {W0}
    s_cbranch_scc0 hf_pc
    ''')
    scond(SA, 24, 16, 'hf_cc')
    for q in range(6): sload(SA, 24, 5 - q)
    a(f'''
    hf_pc:
    s_waitcnt vmcnt(0)
    s_branch h_tokd
    h_top:
    s_add_u32 s8, s24, 2
    s_bfe_u32 s8, s8, 0x10001
    s_lshl_b32 s27, s8, 16
    s_xor_b32 s26, s27, 0x10000
    s_setprio {2 if 'sw' in HV else 3}
    s_cmp_ge_u32 s12, 8
    s_cbranch_scc1 h_pr
    s_setprio {3 if 'sw' in HV else 2}
    h_pr:
    v_mov_b32 v{ACC}, 0
    v_mov_b32 v{ACC+1}, 0
    v_mov_b32 v{ACC+2}, 0
    v_mov_b32 v{ACC+3}, 0
    s_waitcnt lgkmcnt(0)
    s_cmp_ge_u32 s12, 9
    s_cbranch_scc1 h_bl
    v_mov_b32 v{ACB}, 0
    v_mov_b32 v{ACB+1}, 0
    v_mov_b32 v{ACB+2}, 0
    v_mov_b32 v{ACB+3}, 0
    s_mov_b32 s13, s19
    s_mov_b32 s14, s23
    s_barrier
    ''')
    a.stamp_if(4, 24, 3)
    if 'ep' in HV: a('s_setprio 0')
    if 'fu' in HV:
        a('''
        s_or_b32 s36, s13, s14
        s_cbranch_scc1 h_es
        ''')
        L = [(S, A, j) for j in range(NE) for S, A in ((SA, ACC), (SB, ACB))]
        for i, (S, A, j) in enumerate(L):
            blk_reads(a, S, j, i)
            if i >= PF:
                a(f's_waitcnt lgkmcnt({4*PF})')
                blk_mfma(a, i - PF, L[i - PF][1])
        for i in range(len(L) - PF, len(L)):
            a(f's_waitcnt lgkmcnt({4*(len(L)-1-i)})')
            blk_mfma(a, i, L[i][1])
        a('s_branch h_eb')
        a('h_es:')
    early(a, 'h_ea', SA, ACC, 13)
    early(a, 'h_eb', SB, ACB, 14)
    if 'ep' in HV: a('s_setprio 3')
    a('h_bl:')
    a.stamp_if(2, 24, 3)
    a('s_barrier')
    a.stamp_if(5, 24, 2)
    a.stamp_if(3, 24, 3)
    a('''
    s_cmp_eq_u32 s24, 6
    s_cbranch_scc1 h_tok
    h_tokd:
    ''')
    gather(a, 'ga', SA, 16, 16, 18, GA, True, ACC, 13)
    a.stamp_if(6, 24, 2)
    a('''
    s_cmp_eq_u32 s15, 0
    s_cbranch_scc1 h_nob
    s_setprio 0
    s_waitcnt vmcnt(2)
    ''')
    gather(a, 'gb', SB, 20, 17, 19, GB, False, ACB, 14)
    a.stamp_if(7, 24, 2)
    a(f'''
    s_cmp_eq_u32 s24, 6
    s_cbranch_scc1 h_end
    s_barrier
    ds_write_b64 v0, v[{GA}:{GA+1}]
    ds_write_b64 v0, v[{GB}:{GB+1}] offset:8192
    s_branch h_next
    h_nob:
    s_cmp_eq_u32 s24, 6
    s_cbranch_scc1 h_last
    s_barrier
    ds_write_b64 v0, v[{GA}:{GA+1}]
    s_branch h_next
    h_poll:
    s_setprio 3
    s_mov_b64 exec, -1
    ''')
    Q = [40 + 2 * j for j in range(5)]
    NW = [50, 52, 54, 56, 20]
    def P(r): return f's[{r}:{r+1}]'
    for j in range(4): a(f's_mov_b64 {P(Q[j])}, -1')
    a(f'''
    s_mov_b32 s{Q[4]}, s31
    s_mov_b32 s{Q[4]+1}, 0
    s_mov_b32 s58, {TMO}
    ''')
    a.stamp_if(8, 24, 2)
    def lload(j, sc='sc1'): a(f'global_load_dwordx4 v[{SB+4*j}:{SB+3+4*j}], v19, s[6:7] offset:{j*1024-4096} {sc}')
    def lall():
        for j in range(4): lload(j)
        a(f'''
        s_and_b64 exec, {P(Q[4])}, {P(Q[4])}
        s_cbranch_scc0 h_pl0
        ''')
        lload(4)
        a('''
        h_pl0:
        s_mov_b64 exec, -1
        ''')
    for e, p0 in enumerate((0, 4) if 'sw' in HV else (4, 0)):
        def el():
            for i in range(p0, p0 + 4):
                a(f'global_load_dwordx4 v[{BUF+4*i}:{BUF+3+4*i}], v2, s[6:7] offset:{i*1024-4096} sc1')
        if e == 1 and 'po' not in HV:
            a.stamp_if(9, 24, 2)
            if 'pb' not in HV: el()
            a('s_barrier')
            if 'pb' in HV: el()
            a.stamp_if(10, 24, 2)
            for i in range(4 - p0, 8 - p0):
                a(f'ds_write_b128 v3, v[{BUF+4*i}:{BUF+3+4*i}] offset:{i*1024}')
            a(f'ds_write_b64 v0, v[{GA}:{GA+1}]')
            if 'lw' in HV: a('s_waitcnt lgkmcnt(0)')
            if 'le' in HV: lall()
            a('s_branch h_pc1')
        a(f'h_pe{e}:')
        cnt(a, 14)
        el()
        b = BUF + 4 * p0
        a(f'''
        h_pc{e}:
        s_waitcnt vmcnt(3)
        v_bitop3_b32 v6, v{b}, v{b+2}, s8 bitop3:0x7e
        s_waitcnt vmcnt(2)
        v_bitop3_b32 v30, v{b+4}, v{b+6}, s8 bitop3:0x7e
        s_waitcnt vmcnt(1)
        v_bitop3_b32 v31, v{b+8}, v{b+10}, s8 bitop3:0x7e
        v_or3_b32 v6, v6, v30, v31
        s_waitcnt vmcnt(0)
        v_bitop3_b32 v30, v{b+12}, v{b+14}, s8 bitop3:0x7e
        v_bitop3_b32 v6, v6, v30, 1 bitop3:0xa8
        v_cmp_ne_u32 vcc, 0, v6
        s_and_b64 exec, vcc, vcc
        s_cbranch_scc0 h_ped{e}
        s_sub_u32 s58, s58, 1
        s_cbranch_scc0 h_pe{e}
        buffer_wbl2 sc1
        s_mov_b32 s58, {TMO}
        s_sub_u32 s30, s30, 1
        s_cbranch_scc0 h_pe{e}
        s_mov_b32 s30, 0
        h_ped{e}:
        s_mov_b64 exec, -1
        ''')
    sc = 'sc1'
    if 'po' in HV:
        a.stamp_if(9, 24, 2)
        a('s_barrier')
        a.stamp_if(10, 24, 2)
        for i in range(8):
            a(f'ds_write_b128 v3, v[{BUF+4*i}:{BUF+3+4*i}] offset:{i*1024}')
        a(f'ds_write_b64 v0, v[{GA}:{GA+1}]')
        if 'pl' in HV:
            a('s_waitcnt lgkmcnt(0)')
            a('s_barrier')
    if 'le' not in HV: lall()
    for i in range(p0, p0 + 4):
        if 'po' not in HV: a(f'ds_write_b128 v3, v[{BUF+4*i}:{BUF+3+4*i}] offset:{i*1024}')
    if 'pl' not in HV:
        a('s_waitcnt lgkmcnt(0)')
        a('s_barrier')
    a.stamp_if(11, 24, 2)
    if 'fp' in HV:
        a(f'''
        s_waitcnt vmcnt(0)
        v_bitop3_b32 v6, v{SB}, v{SB+2}, s8 bitop3:0x7e
        v_bitop3_b32 v30, v{SB+4}, v{SB+6}, s8 bitop3:0x7e
        v_bitop3_b32 v31, v{SB+8}, v{SB+10}, s8 bitop3:0x7e
        v_or3_b32 v6, v6, v30, v31
        v_bitop3_b32 v30, v{SB+12}, v{SB+14}, s8 bitop3:0x7e
        v_bitop3_b32 v31, v{SB+16}, v{SB+18}, s8 bitop3:0x7e
        v_bitop3_b32 v6, v6, v30, 1 bitop3:0xa8
        v_and_b32 v31, 1, v31
        v_cmp_ne_u32 vcc, 0, v6
        v_cmp_ne_u32 s[36:37], 0, v31
        s_and_b64 s[36:37], s[36:37], {P(Q[4])}
        s_or_b64 vcc, vcc, s[36:37]
        s_cbranch_scc1 h_ly
        ''')
        for j in range(5):
            if j == 4: a(f's_mov_b64 exec, {P(Q[4])}')
            a(f'ds_write_b128 v3, v[{SB+4*j}:{SB+3+4*j}] offset:{8192+j*1024}')
        a('s_branch h_lyd')
    a('h_ly:')
    cnt(a, 15)
    a('s_waitcnt vmcnt(0)')
    for j in range(5):
        a(f'''
        s_mov_b64 exec, {P(Q[j])}
        v_bitop3_b32 v6, v{SB+4*j}, v{SB+4*j+2}, s8 bitop3:0x7e
        v_and_b32 v6, 1, v6
        v_cmp_ne_u32 {P(Q[j])}, 0, v6
        s_andn2_b64 {P(NW[j])}, exec, {P(Q[j])}
        s_and_b64 exec, {P(Q[j])}, {P(Q[j])}
        s_cbranch_scc0 h_ls{j}
        ''')
        lload(j)
        a(f'h_ls{j}:')
    for j in range(5):
        a(f'''
        s_mov_b64 exec, {P(NW[j])}
        ds_write_b128 v3, v[{SB+4*j}:{SB+3+4*j}] offset:{8192+j*1024}
        ''')
    a(f'''
    s_or_b64 s[36:37], {P(Q[0])}, {P(Q[1])}
    s_or_b64 s[38:39], {P(Q[2])}, {P(Q[3])}
    s_or_b64 s[36:37], s[36:37], {P(Q[4])}
    s_or_b64 s[36:37], s[36:37], s[38:39]
    s_cbranch_scc0 h_lyd
    s_sub_u32 s58, s58, 1
    s_cbranch_scc0 h_ly
    buffer_wbl2 sc1
    s_mov_b32 s58, {TMO}
    s_sub_u32 s30, s30, 1
    s_cbranch_scc0 h_ly
    s_mov_b32 s30, 0
    h_lyd:
    s_mov_b64 exec, s[34:35]
    global_store_dwordx4 v18, v[20:23], s[28:29] sc1
    s_mov_b64 exec, -1
    ''')
    a.stamp_if(12, 24, 2)
    a(f'''
    h_next:
    s_add_u32 s24, s24, 1
    s_add_u32 s28, s28, {HSZ}
    s_addc_u32 s29, s29, 0
    s_mov_b64 s[36:37], s[6:7]
    s_mov_b64 s[6:7], s[10:11]
    s_mov_b64 s[10:11], s[36:37]
    s_branch h_top
    h_tok:
    s_cmp_lg_u32 s12, 15
    s_cbranch_scc1 h_tokd
    v_mov_b32 v6, 1
    s_lshl_b64 exec, 1, s9
    global_store_dword v17, v6, s[4:5] sc1
    s_mov_b64 exec, -1
    s_branch h_tokd
    h_last:
    s_cmp_lg_u32 s12, 15
    s_cbranch_scc1 h_end
    s_mov_b32 s58, {TMO}
    s_mov_b64 exec, 0xff
    h_tp:
    global_load_dword v6, v17, s[4:5] sc1
    s_waitcnt vmcnt(0)
    v_cmp_eq_u32 vcc, 0, v6
    s_and_b64 exec, vcc, vcc
    s_cbranch_scc0 h_end
    s_sub_u32 s58, s58, 1
    s_cbranch_scc0 h_tp
    buffer_wbl2 sc1
    s_mov_b32 s58, {TMO}
    s_sub_u32 s30, s30, 1
    s_cbranch_scc0 h_tp
    s_branch h_end
    ''')
    overflow(a, 'ga', 16, ACC)
    overflow(a, 'gb', 20, ACB)
    a('h_end:')
    a('s_endpgm')
    return a
```
